```python
import torch

def _softmax(x, axis=-1):
    return torch.softmax(x, dim=axis)
def _gelu(x):
    return torch.nn.functional.gelu(x, approximate="tanh")
def _silu(x):
    return torch.nn.functional.silu(x)
def _sigmoid(x):
    return torch.sigmoid(x)
def _layernorm(x, axis=-1, eps=1e-5):
    m = x.mean(dim=axis, keepdim=True)
    v = x.var(dim=axis, keepdim=True, unbiased=False)
    return (x - m) / torch.sqrt(v + eps)
def _scatter_add(tgt, idx, src, axis=0):
    return tgt.clone().index_add_(axis, idx, src)
def _segment_sum(src, seg, n):
    out = torch.zeros((n,) + src.shape[1:], dtype=src.dtype)
    return out.index_add_(0, seg, src)
def _pad(x, pw):
    flat = tuple(v for pair in reversed(pw) for v in pair)
    return torch.nn.functional.pad(x, flat)

kernel_name = 'sequential_preLN__sliding_block_cached__dense_activation_gelu__decode'

def setup_inputs():

    _w = (lambda a: (lambda t: t.to(torch.bfloat16) if t.is_floating_point() else t)(torch.as_tensor(a)))
    def _A_setup():
        B, Sq, D = 8, 1, 512
        Hq, Hkv, Sk, Dh = 32, 8, 4096, 128
        assert Hq % Hkv == 0, (Hq, Hkv)
        return {
            "x": _w((lambda *s: torch.randn(*s, dtype=torch.bfloat16) * 0.05)(B, Sq, D)),
            "k_cache": _w((lambda *s: torch.randn(*s, dtype=torch.bfloat16) * 1.6)(B, Hkv, Sk, Dh)),
            "v_cache": _w((lambda *s: torch.randn(*s, dtype=torch.bfloat16) * 0.4)(B, Hkv, Sk, Dh)),
            "wq": _w((lambda *s: torch.randn(*s, dtype=torch.bfloat16) * 1.6)(D, Hq * Dh) * (D ** -0.5)),
            "wo": _w((lambda *s: torch.randn(*s, dtype=torch.bfloat16) * 0.4)(Hq * Dh, D) * ((Hq * Dh) ** -0.5)),
        }
    _A_in = _A_setup()

    def _B_setup():
        B, S, D, F = 8, 1, 512, 1792
        return {
            "x": _w((lambda *s: torch.randn(*s, dtype=torch.bfloat16) * 0.05)(B, S, D)),
            "w1": _w((lambda *s: torch.randn(*s, dtype=torch.bfloat16) * 0.8)(D, F) * (D ** -0.5)),
            "b1": _w((lambda *s: torch.randn(*s, dtype=torch.bfloat16) * 0.8)(F) * 0.01),
            "w2": _w((lambda *s: torch.randn(*s, dtype=torch.bfloat16) * 0.1)(F, D) * (F ** -0.5)),
            "b2": _w((lambda *s: torch.randn(*s, dtype=torch.bfloat16) * 0.1)(D) * 0.01),
        }
    _B_in = _B_setup()

    return {
        "A_x": _A_in["x"],
        "A_k_cache": _A_in["k_cache"],
        "A_v_cache": _A_in["v_cache"],
        "A_wq": _A_in["wq"],
        "A_wo": _A_in["wo"],
        "B_x": _B_in["x"],
        "B_w1": _B_in["w1"],
        "B_b1": _B_in["b1"],
        "B_w2": _B_in["w2"],
        "B_b2": _B_in["b2"],
    }

def reference(A_x, A_k_cache, A_v_cache, A_wq, A_wo, B_x, B_w1, B_b1, B_w2, B_b2):
    def _A_ref(x, k_cache, v_cache, wq, wo):
        B, Sq, D = x.shape
        Hq, Dh = 32, 128
        Hkv, Sk = k_cache.shape[1], k_cache.shape[2]
        W = min(4096, max(256, Sk // 4))
        rep = Hq // Hkv
        q = (lambda x, *d: x.permute(*d))((x @ wq).reshape(B, Sq, Hq, Dh), 0, 2, 1, 3)
        k = (lambda x, n, axis: torch.repeat_interleave(x, n, dim=axis))(k_cache[:, :, Sk - W:, :], rep, axis=1)
        v = (lambda x, n, axis: torch.repeat_interleave(x, n, dim=axis))(v_cache[:, :, Sk - W:, :], rep, axis=1)
        scores = torch.einsum("bhqd,bhkd->bhqk", q, k) * (Dh ** -0.5)
        p = _softmax(scores, axis=-1)
        o = torch.einsum("bhqk,bhkd->bhqd", p, v)
        return (lambda x, *d: x.permute(*d))(o, 0, 2, 1, 3).reshape(B, Sq, Hq * Dh) @ wo

    def _B_ref(x, w1, b1, w2, b2):
        h = torch.einsum("bsd,df->bsf", x, w1) + b1
        h = _gelu(h)
        return torch.einsum("bsf,fd->bsd", h, w2) + b2

    x = A_x
    h = x + _A_ref(_layernorm(x, axis=-1), A_k_cache, A_v_cache, A_wq, A_wo)
    h2 = h + _B_ref(_layernorm(h, axis=-1), B_w1, B_b1, B_w2, B_b2)
    return h2
```

```python
import re

TRANS = ("v_exp_f32", "v_log_f32", "v_rcp_f32", "v_rsq_f32", "v_sqrt_f32", "v_sin_f32", "v_cos_f32")

def regs_of(tok):
    tok = tok.strip()
    tok = re.sub(r"^(-|\|)+", "", tok); tok = tok.rstrip("|")
    m = re.fullmatch(r"abs\((.*)\)", tok)
    if m: tok = m.group(1)
    m = re.fullmatch(r"([vsa])(\d+)", tok)
    if m: return {tok}
    m = re.fullmatch(r"([vsa])\[(\d+):(\d+)\]", tok)
    if m: return {f"{m.group(1)}{i}" for i in range(int(m.group(2)), int(m.group(3)) + 1)}
    if tok in ("vcc", "vcc_lo", "vcc_hi"): return {"vcc"}
    if tok in ("exec", "exec_lo", "exec_hi"): return {"exec"}
    if tok == "m0": return {"m0"}
    return set()

class Ins:
    def __init__(self, text):
        self.text = text
        t = text.split(";")[0].strip()
        self.label = None
        if t.endswith(":"):
            self.label = t[:-1]; self.op = None; self.dst = set(); self.src = set(); self.kind = "label"; return
        if t.startswith(".") or not t:
            self.op = None; self.dst = set(); self.src = set(); self.kind = "dir"; return
        parts = t.split(None, 1)
        self.op = op = parts[0]
        rest = parts[1] if len(parts) > 1 else ""
        ops = [o.strip() for o in rest.split(",")] if rest else []
        mods = ""
        if ops:
            fixed = []; depth = 0; cur = ""
            for ch in rest:
                if ch == "[": depth += 1
                if ch == "]": depth -= 1
                if ch == "," and depth == 0: fixed.append(cur.strip()); cur = ""
                else: cur += ch
            fixed.append(cur.strip()); ops = fixed
            last = ops[-1].split(None, 1)
            ops[-1] = last[0]; mods = last[1] if len(last) > 1 else ""
        self.ops = ops; self.mods = mods
        R = [regs_of(o) for o in ops]
        allr = set().union(*R) if R else set()
        self.dpp = ("_dpp" in op) or any(k in mods for k in ("row_", "quad_perm", "wave_"))
        self.sdwa = "_sdwa" in op
        self.target = None
        if op.startswith("v_mfma"):
            self.kind = "mfma"; self.dst = R[0]; self.srcA = R[1]; self.srcB = R[2]; self.srcC = R[3]; self.src = R[1] | R[2] | R[3]
            self.passes = 8 if "32x32" in op else 4
        elif op.startswith("v_"):
            self.kind = "valu"
            if op.startswith("v_permlane"):
                self.dst = R[0] | R[1]; self.src = R[0] | R[1]
            elif op.startswith("v_cmp"):
                self.dst = R[0]; self.src = set().union(*R[1:])
                if op.startswith("v_cmpx"): self.dst |= {"exec"}
            elif op.startswith(("v_add_co", "v_sub_co", "v_addc_co", "v_subb_co", "v_div_scale")):
                self.dst = R[0] | R[1]; self.src = set().union(*R[2:])
            else:
                self.dst = R[0]; self.src = set().union(*R[1:]) if len(R) > 1 else set()
                if op.startswith(("v_fmac", "v_dot2c", "v_writelane")) or self.dpp or self.sdwa: self.src |= R[0]
                if op.startswith("v_cndmask") and len(ops) == 3: self.src |= {"vcc"}
        elif op.startswith("ds_"):
            self.kind = "ds"
            if op.startswith(("ds_read", "ds_bpermute", "ds_swizzle", "ds_permute")) or "_rtn" in op:
                self.dst = R[0]; self.src = set().union(*R[1:])
            else:
                self.dst = set(); self.src = allr
        elif op.startswith(("global_", "buffer_", "flat_")):
            self.kind = "vmem"
            islds = ("lds" in mods.split()) or "_lds_" in op
            self.islds = islds
            if "load" in op and not islds:
                self.dst = R[0]; self.src = set().union(*R[1:])
            else:
                self.dst = set(); self.src = allr
            if islds: self.src = self.src | {"m0"}
            self.wide_store = ("store" in op) and op.endswith(("x3", "x4"))
            if self.wide_store:
                self.store_data = R[1] if op.startswith("global_") else R[0]
        elif op.startswith("s_"):
            self.kind = "salu"
            if op in ("s_branch",) or op.startswith("s_cbranch"):
                self.target = ops[0]; self.dst = set(); self.src = set()
            elif op.startswith(("s_cmp", "s_bitcmp", "s_waitcnt", "s_nop", "s_barrier", "s_endpgm", "s_sleep", "s_setprio")):
                self.dst = set(); self.src = allr
            else:
                self.dst = R[0] if R else set(); self.src = set().union(*R[1:]) if len(R) > 1 else set()
                if "saveexec" in op: self.dst = self.dst | {"exec"}
        else:
            raise ValueError("unknown op " + text)
    def states(self):
        if self.kind in ("label", "dir"): return 0
        if self.op == "s_nop": return int(self.ops[0]) + 1
        return 1

def need(p, c):
    n = 0
    vd = {r for r in p.dst if r[0] in "va" and r != "vcc"}
    sd = {r for r in p.dst if r[0] == "s" or r == "vcc"}
    if p.kind == "valu":
        if c.kind == "valu":
            if c.dpp and vd & c.src: n = max(n, 2)
            if c.op.startswith("v_permlane") and vd & c.src: n = max(n, 2)
            if c.op.startswith(("v_readlane", "v_readfirstlane")) and vd & c.src: n = max(n, 1)
            if p.op.startswith(TRANS) and vd & (c.src | c.dst) and not c.op.startswith(TRANS): n = max(n, 1)
            if p.op.startswith(TRANS) and vd & c.src: n = max(n, 1)
            if (p.sdwa or "op_sel" in p.mods) and vd & (c.src | c.dst): n = max(n, 1)
            if sd & c.src:
                n = max(n, 4 if c.op.startswith(("v_readlane", "v_writelane")) else 2)
            if "exec" in p.dst: n = max(n, 5)
        if c.kind == "mfma" and vd & c.src: n = max(n, 2)
        if c.kind == "mfma" and "exec" in p.dst: n = max(n, 4)
        if c.kind == "vmem" and sd & c.src: n = max(n, 5)
        if c.kind == "salu" and sd & c.src: n = max(n, 1)
        if c.kind in ("vmem", "ds") and p.op.startswith(TRANS) and vd & c.src: n = max(n, 1)
    if p.kind == "mfma":
        big = {4: 8, 8: 12}[p.passes]; ov = {4: 6, 8: 10}[p.passes]; war = {4: 3, 8: 7}[p.passes]
        if c.kind == "mfma":
            if p.dst & (c.srcA | c.srcB): n = max(n, big)
            if p.dst & c.srcC and not (p.dst == c.srcC and p.passes == c.passes): n = max(n, ov)
            if p.dst & c.dst and not (p.dst == c.srcC): n = max(n, big)
        elif c.kind in ("valu", "ds", "vmem"):
            if p.dst & (c.src | c.dst): n = max(n, big)
            if c.kind == "valu" and p.srcC & c.dst: n = max(n, war)
            if c.kind in ("ds", "vmem") and p.srcC & c.dst: n = max(n, war)
    if p.kind == "salu" and "m0" in p.dst and c.kind == "vmem" and "m0" in c.src: n = max(n, 1)
    if p.kind == "vmem" and getattr(p, "wide_store", False) and p.store_data & c.dst: n = max(n, 2)
    if p.kind == "ds" and p.op in ("ds_write_b128", "ds_write_b96") and False: pass
    return n

def pad_hazards(lines, verbose=False):
    ins = [Ins(l) for l in lines]
    total = 0
    while True:
        lab = {x.label: i for i, x in enumerate(ins) if x.label}
        br = {}
        for i, x in enumerate(ins):
            if getattr(x, "target", None): br.setdefault(lab[x.target], []).append(i)
        def preds(i):
            out = []
            if i > 0:
                p = ins[i-1]
                if not (p.op in ("s_branch", "s_endpgm")): out.append(i-1)
            out += br.get(i, [])
            return out
        fix = None
        for i, c in enumerate(ins):
            if c.kind in ("label", "dir"): continue
            worst = 0
            stack = [(j, 0) for j in preds(i)]
            seen = set()
            while stack:
                j, d = stack.pop()
                if (j, d) in seen or d >= 12: continue
                seen.add((j, d))
                p = ins[j]
                if p.kind not in ("label", "dir"):
                    n = need(p, c)
                    if n - d > worst: worst = n - d; why = p.text
                for k in preds(j): stack.append((k, d + p.states()))
            if worst > 0:
                fix = (i, worst, why); break
        if not fix: break
        i, w, why = fix
        if verbose: print(f"pad {w} before '{ins[i].text}' after '{why}'")
        ins.insert(i, Ins(f"s_nop {w-1}"))
        total += w
    return [x.text for x in ins], total

class Asm:
    def __init__(self):
        self.L = []
    def __call__(self, s):
        for l in s.split("\n"):
            l = l.strip()
            if l: self.L.append(l)
    def label(self, n): self.L.append(n + ":")
```

```python
import sys, math, struct
from asmlib import Asm, pad_hazards

KNAME = "sequential_preLN__sliding_block_cached__dense_activation_gelu__decode_kernel"
HEADER = open("sequential_preLN__sliding_block_cached__dense_activation_gelu__decode.s.ref").read().split("; Override launch")[0]

def f2u(x): return "0x%08x" % struct.unpack("<I", struct.pack("<f", x))[0]

WS_E, WS_XCC, WS_LSE, WS_H, WS_A, WS_Q, WS_O, WS_F, WS_STAMP = 0, 0x1000, 0x4000, 0x10000, 0x40000, 0x80000, 0x100000, 0x200000, 0x1000000
L_K, L_V, L_WQ, L_XN, L_Q, L_P, L_MAX, L_SUM, L_HL, L_Z = 0, 65536, 131072, 147456, 155776, 157056, 159104, 159232, 159360, 159872
Z_CA, Z_CB, Z_CC, Z_QRDY, Z_KCONS, Z_FXW, Z_FK, Z_LOCAL, Z_FV = 0, 4, 8, 12, 16, 20, 24, 28, 32
Z_OUT, Z_C, Z_ST, Z_S = 128, 256, 320, 512
LDS_BYTES = 163840
MASK_N8 = ("0x00ff00ff", "0x00ff00ff")
LOG2E = math.log2(math.e)

def gen(stamps=False, win=20, opt=None):
    opt = opt or {}
    A = Asm()
    uid = [0]
    def U(p): uid[0] += 1; return f"{p}_{uid[0]}"
    tail = Asm()
    sX, sK, sV, sWQ, sWO, sW1, sB1, sW2, sB2, sOUT, sWS = "s[4:5]", "s[6:7]", "s[8:9]", "s[10:11]", "s[12:13]", "s[16:17]", "s[18:19]", "s[20:21]", "s[22:23]", "s[24:25]", "s[28:29]"
    sE, sT, sW, sY, sJ, sB, sSP, sTO, sLOC, sF, sSIG, sM8 = "s30", "s31", "s32", "s33", "s34", "s35", "s36", "s37", "s38", "s39", "s44", "s45"
    t0, t1, t2, t3, t4, t5 = "s46", "s47", "s48", "s49", "s50", "s51"
    vL, vN, vG, vT, vZ, vOne, vTA, vS, vXR, vB1, vB2 = "v0", "v1", "v2", "v3", "v4", "v5", "v6", "v7", "v8", "v9", "v10"
    nst = [0]
    def stamp(k):
        if stamps: A(f"s_memrealtime s[{64+2*k}:{65+2*k}]\ns_waitcnt lgkmcnt(0)")
    def spin(off, n, sleep=0):
        l, d = U("spin"), U("done")
        A(f"{l}:\nds_read_b32 {vS}, {vZ} offset:{off}\ns_waitcnt lgkmcnt(0)\nv_readfirstlane_b32 {t0}, {vS}")
        A(f"s_cmp_ge_u32 {t0}, {n}\ns_cbranch_scc1 {d}")
        if sleep: A(f"s_sleep {sleep}")
        A(f"s_sub_u32 {sTO}, {sTO}, 1\ns_cbranch_scc0 {l}\ns_branch L_exit\n{d}:")
    def arrive(off):
        A(f"s_waitcnt lgkmcnt(0)\ns_mov_b64 exec, 1\nds_add_u32 {vZ}, {vOne} offset:{off}\ns_mov_b64 exec, -1")
    def wave_sum(v, s):
        for m in ("quad_perm:[1,0,3,2] row_mask:0xf", "quad_perm:[2,3,0,1] row_mask:0xf", "row_half_mirror row_mask:0xf", "row_mirror row_mask:0xf",
                  "row_bcast:15 row_mask:0xa", "row_bcast:31 row_mask:0xc"):
            A(f"v_add_f32_dpp {v}, {v}, {v} {m} bank_mask:0xf")
        A(f"v_readlane_b32 {s}, {v}, 63")
    def rnd(d, a):
        A(f"v_cvt_pk_bf16_f32 {d}, {a}, {a}\nv_lshlrev_b32 {d}, 16, {d}")
    def check(regs, acc, first=True):
        for i, r in enumerate(regs):
            if i == 0 and first: A(f"v_xor_b32 {acc}, {sT}, v{r}")
            else: A(f"v_bitop3_b32 {acc}, {acc}, v{r}, {sT} bitop3:0xf6")
    def check_end(acc, loop):
        d = U("ok")
        A(f"v_and_b32 {acc}, 0xff, {acc}\nv_cmp_ne_u32 vcc, 0, {acc}\ns_cbranch_vccz {d}")
        A(f"s_sub_u32 {sTO}, {sTO}, 1\ns_cbranch_scc0 {loop}\ns_branch L_exit\n{d}:")
    def tag(d, s):
        A(f"v_and_or_b32 v{d}, v{s}, {sM8}, {vT}")
    def store_local(text):
        s, b = U("slow"), U("back")
        A(f"s_cmp_eq_u32 {sLOC}, 0\ns_cbranch_scc1 {s}\n{text}\n{b}:")
        tail(f"{s}:\n" + "\n".join(l + " sc1" for l in text.split("\n")) + f"\ns_branch {b}")
    def rng(a, n): return f"v[{a}:{a+n-1}]"

    A(f"s_cmp_ge_u32 s2, 256\ns_cbranch_scc1 L_end")
    A("s_load_dwordx16 s[4:19], s[0:1], 0\ns_load_dwordx8 s[20:27], s[0:1], 64\ns_load_dwordx2 s[28:29], s[0:1], 96")
    if stamps: A("s_memrealtime s[64:65]")
    A(f"v_lshrrev_b32 v1, 6, v0\nv_and_b32 {vL}, 63, v0\nv_readfirstlane_b32 {sW}, v1")
    A(f"s_and_b32 {sY}, s2, 7\ns_lshr_b32 {sJ}, s2, 3\ns_lshr_b32 {sB}, s2, 5\ns_and_b32 {sSP}, {sJ}, 3")
    A(f"s_mov_b32 {sTO}, 0x80000\ns_mov_b32 {sM8}, 0xffffff00")
    A(f"v_and_b32 {vN}, 15, {vL}\nv_lshrrev_b32 {vG}, 4, {vL}\nv_mov_b32 {vZ}, {L_Z}\nv_mov_b32 {vOne}, 1")
    A(f"s_cmp_eq_u32 {sW}, 8\ns_cbranch_scc1 L_loader")

    A(f"s_lshl_b32 {t0}, {sW}, 10\nv_lshlrev_b32 v11, 4, {vL}\nv_add_u32 v12, {L_Z}, v11\nv_add_u32 v11, {t0}, v11")
    A("v_mov_b32 v20, 0\nv_mov_b32 v21, 0\nv_mov_b32 v22, 0\nv_mov_b32 v23, 0")
    A("ds_write_b128 v12, v[20:23]")
    A(f"s_and_b32 {t0}, {sSP}, 1\ns_lshl_b32 {sF}, {sB}, 1\ns_add_u32 {sF}, {sF}, {t0}")
    A(f"s_lshr_b32 {t0}, {sSP}, 1\ns_lshr_b32 {t1}, {sY}, 2\ns_xor_b32 {t0}, {t0}, {t1}\ns_lshl_b32 {t0}, {t0}, 4\ns_add_u32 {sSIG}, {sF}, {t0}")
    A(f"s_and_b32 {t2}, {sW}, 3")
    A(f"v_and_b32 v14, 1, {vG}\nv_lshrrev_b32 v15, 1, {vG}\nv_lshl_add_u32 v14, v14, 1, v15")
    A(f"v_and_b32 v15, 3, {vL}\nv_lshl_add_u32 v14, v15, 2, v14\ns_lshl_b32 {t0}, {t2}, 4\nv_add_u32 v14, {t0}, v14")
    A(f"v_bfe_u32 v15, {vL}, 2, 1")
    A(f"v_lshl_add_u32 v13, v15, 6, v14")
    A(f"s_and_b32 {t0}, {sSIG}, 3\ns_lshl_b32 {t0}, {t0}, 10\ns_lshr_b32 {t1}, {sSIG}, 2\ns_lshl_b32 {t1}, {t1}, 6\ns_add_u32 {t0}, {t0}, {t1}")
    A(f"v_lshl_add_u32 v14, v15, 9, v14\nv_add_u32 v14, {t0}, v14")
    A(f"v_lshlrev_b32 v15, 1, v14")
    A(f"s_min_u32 {t0}, {sF}, 13\ns_mul_i32 {t1}, {sY}, 14\ns_add_u32 {t3}, {t0}, {t1}")
    A(f"s_mov_b32 s52, {t3}")
    A(f"s_lshl_b32 {t0}, {t3}, 5\nv_lshrrev_b32 v16, 3, {vN}\nv_lshlrev_b32 v16, 2, v16\nv_lshl_add_u32 v16, {vG}, 3, v16\nv_add_u32 v16, {t0}, v16")
    A(f"s_lshr_b32 {t0}, {sSIG}, 2\ns_lshl_b32 {t0}, {t0}, 1\ns_bfe_u32 {t1}, {sY}, 0x10001\ns_add_u32 s53, {t0}, {t1}")
    A(f"s_and_b32 {t0}, {sSIG}, 3\ns_lshl_b32 {t0}, {t0}, 1\ns_and_b32 {t1}, {sY}, 1\ns_add_u32 s54, {t0}, {t1}")
    A(f"s_lshl_b32 {t0}, s53, 6\nv_lshlrev_b32 v17, 2, {vN}\nv_add_u32 v17, {t0}, v17")
    A("s_waitcnt lgkmcnt(0)")
    A(f"global_load_dwordx4 v[52:55], v11, {sX}")
    A(f"global_load_ushort {vXR}, v15, {sX}\nglobal_load_dword {vB1}, v16, {sB1}\nglobal_load_dword {vB2}, v17, {sB2}")
    A(f"s_load_dword {sE}, {sWS}, {WS_E}")
    A("s_barrier")
    A(f"v_lshrrev_b32 v18, 2, {vN}\nv_lshl_add_u32 v19, {vG}, 3, v18\nv_lshlrev_b32 v19, 7, v19\nv_lshrrev_b32 v18, 1, v18")
    A(f"v_and_b32 v12, 1, {vG}\nv_lshl_add_u32 v18, v12, 1, v18\nv_xor_b32 v18, {t2}, v18\nv_lshl_add_u32 v19, v18, 5, v19")
    A(f"v_and_b32 v12, 3, {vN}\nv_lshl_add_u32 {vTA}, v12, 3, v19")
    A("s_waitcnt vmcnt(3)")
    stamp(1)
    X = list(range(56, 64))
    for i in range(4):
        A(f"v_lshlrev_b32 v{X[2*i]}, 16, v{52+i}\nv_and_b32 v{X[2*i+1]}, 0xffff0000, v{52+i}")
    A(f"v_add_f32 v64, v56, v57\nv_add_f32 v65, v58, v59\nv_add_f32 v66, v60, v61\nv_add_f32 v67, v62, v63\nv_add_f32 v64, v64, v65\nv_add_f32 v66, v66, v67\nv_add_f32 v64, v64, v66")
    wave_sum("v64", t0)
    A(f"v_mov_b32 v65, {f2u(1/512)}\nv_mul_f32 v64, {t0}, v65")
    for i in range(8): A(f"v_sub_f32 v{68+i}, v{X[i]}, v64")
    A("v_mul_f32 v66, v68, v68")
    for i in range(1, 8): A(f"v_fmac_f32 v66, v{68+i}, v{68+i}")
    wave_sum("v66", t0)
    rnd("v64", "v64")
    A(f"v_mul_f32 v66, {t0}, v65")
    rnd("v66", "v66"); A(f"v_add_f32 v66, {f2u(1e-5)}, v66"); rnd("v66", "v66")
    A("v_sqrt_f32 v66, v66"); rnd("v66", "v66"); A("v_rcp_f32 v66, v66")
    for i in range(8): A(f"v_sub_f32 v{68+i}, v{X[i]}, v64")
    for i in range(4):
        A(f"v_cvt_pk_bf16_f32 v{52+i}, v{68+2*i}, v{69+2*i}")
    for i in range(4):
        A(f"v_lshlrev_b32 v{68+2*i}, 16, v{52+i}\nv_and_b32 v{69+2*i}, 0xffff0000, v{52+i}")
    for i in range(8): A(f"v_mul_f32 v{68+i}, v{68+i}, v66")
    for i in range(4):
        A(f"v_cvt_pk_bf16_f32 v{52+i}, v{68+2*i}, v{69+2*i}")
    A(f"s_mul_i32 {t0}, {sW}, 1040\ns_add_u32 {t0}, {t0}, {L_XN}\nv_lshlrev_b32 v11, 4, {vL}\nv_add_u32 v11, {t0}, v11")
    A("ds_write_b128 v11, v[52:55]")
    arrive(Z_CA)
    A(f"s_add_u32 {sE}, {sE}, 1\ns_and_b32 {sT}, {sE}, 0xff\nv_mov_b32 {vT}, {sT}")
    A(f"s_cmp_ge_u32 {sW}, 4\ns_cbranch_scc1 L_kwait")
    A(f"v_and_b32 v11, 7, {vN}\nv_mul_u32_u24 v11, 1040, v11\nv_lshl_add_u32 v11, {vG}, 4, v11\ns_lshl_b32 {t0}, {sSP}, 8\ns_add_u32 {t0}, {t0}, {L_XN}\nv_add_u32 v11, {t0}, v11")
    A(f"v_add_u32 v12, {L_WQ}, {vTA}")
    A(f"s_lshl_b32 {t0}, {sY}, 16\ns_lshl_b32 {t1}, {sSP}, 11\ns_add_u32 {t0}, {t0}, {t1}\ns_lshl_b32 {t1}, {sB}, 8\ns_add_u32 {t0}, {t0}, {t1}\ns_lshl_b32 {t1}, {sW}, 6\ns_add_u32 {t0}, {t0}, {t1}\ns_add_u32 {t0}, {t0}, {WS_Q}")
    A(f"v_lshlrev_b32 v15, 13, {vN}\nv_lshl_add_u32 v15, {vG}, 4, v15\nv_add_u32 v15, {t0}, v15")
    spin(Z_CA, 8)
    for k in range(4): A(f"ds_read_b128 {rng(68+4*k,4)}, v11 offset:{64*k}")
    spin(Z_FXW, 1)
    stamp(2)
    for k in range(4):
        A(f"ds_read_b64_tr_b16 {rng(52+4*k,2)}, v12 offset:{4096*k}\nds_read_b64_tr_b16 {rng(54+4*k,2)}, v12 offset:{4096*k+512}")
    for k in range(4):
        A(f"s_waitcnt lgkmcnt({6-2*k})")
        A(f"v_mfma_f32_16x16x32_bf16 v[84:87], {rng(52+4*k,4)}, {rng(68+4*k,4)}, {'0' if k==0 else 'v[84:87]'}")
    for i in range(4): tag(84+i, 84+i)
    A(f"s_mov_b32 exec_lo, {MASK_N8[0]}\ns_mov_b32 exec_hi, {MASK_N8[1]}")
    A(f"global_store_dwordx4 v15, v[84:87], {sWS} sc1\ns_mov_b64 exec, -1")
    A(f"s_cmp_eq_u32 {sW}, 3\ns_cbranch_scc1 L_kwait")
    A(f"s_cmp_eq_u32 {sW}, 2\ns_cbranch_scc1 L_xcc")
    A(f"s_lshl_b32 {t0}, {sY}, 3\ns_add_u32 {t0}, {t0}, {sB}\ns_lshl_b32 {t0}, {t0}, 13\ns_lshl_b32 {t1}, {sW}, 10\ns_add_u32 {t0}, {t0}, {t1}\ns_add_u32 {t0}, {t0}, {WS_Q+4096}")
    A(f"v_lshlrev_b32 v15, 4, {vL}\nv_add_u32 v15, {t0}, v15")
    A(f"s_mul_i32 {t0}, {sW}, 640\ns_add_u32 {t0}, {t0}, {L_Q}\nv_lshrrev_b32 v11, 5, {vL}\nv_mul_u32_u24 v11, 320, v11\nv_and_b32 v12, 31, {vL}\nv_lshl_add_u32 v11, v12, 3, v11\nv_add_u32 v11, {t0}, v11")
    A("s_waitcnt vmcnt(0)")
    stamp(3)
    A("L_qpoll:")
    for k in range(4): A(f"global_load_dwordx4 {rng(84+4*k,4)}, v15, {sWS} offset:{2048*k-4096} sc1")
    A("s_waitcnt vmcnt(0)")
    check(range(84, 100), "v12"); check_end("v12", "L_qpoll")
    for i in range(4): A(f"v_add_f32 v{84+i}, v{84+i}, v{88+i}\nv_add_f32 v{92+i}, v{92+i}, v{96+i}")
    for i in range(4): A(f"v_add_f32 v{84+i}, v{84+i}, v{92+i}")
    A("v_cvt_pk_bf16_f32 v84, v84, v85\nv_cvt_pk_bf16_f32 v85, v86, v87\nds_write_b64 v11, v[84:85]")
    arrive(Z_QRDY)
    A("s_branch L_kwait")
    A("L_xcc:")
    A(f"s_getreg_b32 {t0}, hwreg(HW_REG_XCC_ID)\ns_lshl_b32 {t0}, {t0}, 8\ns_or_b32 {t4}, {t0}, {sT}")
    A(f"v_mov_b32 v88, {t4}\nv_mov_b32 v89, {t4}\nv_mov_b32 v90, {t4}\nv_mov_b32 v91, {t4}")
    A(f"s_lshl_b32 {t0}, {sY}, 9\ns_add_u32 {t0}, {t0}, {WS_XCC}\ns_lshl_b32 {t1}, {sJ}, 4\ns_add_u32 {t1}, {t1}, {t0}\nv_mov_b32 v11, {t1}")
    A(f"v_and_b32 v15, 31, {vL}\nv_lshlrev_b32 v15, 4, v15\nv_add_u32 v15, {t0}, v15")
    A(f"s_mov_b64 exec, 1\nglobal_store_dwordx4 v11, v[88:91], {sWS} sc1\ns_mov_b64 exec, -1\ns_waitcnt vmcnt(0)")
    A("L_xpoll:")
    A(f"global_load_dwordx4 v[84:87], v15, {sWS} sc1\ns_waitcnt vmcnt(0)")
    check(range(84, 88), "v12"); check_end("v12", "L_xpoll")
    A(f"v_cmp_ne_u32 vcc, {t4}, v84\ns_cmp_eq_u64 vcc, 0\ns_cselect_b32 {t0}, 1, 0")
    if opt.get("force_global"): A(f"s_mov_b32 {t0}, 0")
    A(f"v_mov_b32 v12, {t0}\nds_write_b32 {vZ}, v12 offset:{Z_LOCAL}")
    arrive(Z_QRDY)
    A("L_kwait:")
    A(f"s_lshl_b32 {t0}, {sW}, 13\nv_xor_b32 v11, {vG}, {vN}\nv_lshlrev_b32 v11, 4, v11\nv_lshl_add_u32 v11, {vN}, 8, v11\nv_add_u32 v11, {t0}, v11")
    A("v_xor_b32 v12, 64, v11\nv_xor_b32 v15, 0x80, v11\nv_xor_b32 v16, 0xc0, v11")
    A(f"v_and_b32 v17, 3, {vN}\nv_mul_u32_u24 v18, 320, v17\nv_lshl_add_u32 v18, {vG}, 4, v18\nv_add_u32 v18, {L_Q}, v18")
    A("s_waitcnt vmcnt(0)")
    spin(Z_FK, 1, sleep=1)
    stamp(4)
    for tt in range(2):
        for j, a in enumerate(("v11", "v12", "v15", "v16")):
            A(f"ds_read_b128 {rng(20+16*tt+4*j,4)}, {a} offset:{4096*tt}")
    arrive(Z_KCONS)
    spin(Z_QRDY, 3, sleep=1)
    stamp(5)
    for j in range(4): A(f"ds_read_b128 {rng(52+4*j,4)}, v18 offset:{64*j}")
    A(f"ds_read_b32 {vS}, {vZ} offset:{Z_LOCAL}\ns_waitcnt lgkmcnt(0)\nv_readfirstlane_b32 {sLOC}, {vS}")
    for j in range(4):
        for tt in range(2):
            A(f"v_mfma_f32_16x16x32_bf16 {rng(68+4*tt,4)}, {rng(20+16*tt+4*j,4)}, {rng(52+4*j,4)}, {'0' if j==0 else rng(68+4*tt,4)}")
    A(f"s_lshl_b32 {t0}, {sW}, 2\ns_add_u32 {t0}, {t0}, {L_MAX}\nv_lshlrev_b32 v11, 5, v17\nv_add_u32 v12, {L_MAX}, v11\nv_add_u32 v11, {t0}, v11")
    A(f"v_lshlrev_b32 v15, 4, v17\nv_lshl_add_u32 v15, {vG}, 6, v15\nv_add_u32 v15, {L_P}, v15\ns_lshl_b32 {t0}, {sW}, 8\nv_add_u32 v16, {t0}, v15")
    def round8(base):
        for i in range(4): A(f"v_cvt_pk_bf16_f32 v{76+i}, v{base+2*i}, v{base+2*i+1}")
        for i in range(4): A(f"v_lshlrev_b32 v{base+2*i}, 16, v{76+i}\nv_and_b32 v{base+2*i+1}, 0xffff0000, v{76+i}")
    round8(68)
    for i in range(8): A(f"v_mul_f32 v{68+i}, {f2u(128**-0.5)}, v{68+i}")
    round8(68)
    A("v_max3_f32 v76, v68, v69, v70\nv_max3_f32 v77, v71, v72, v73\nv_max3_f32 v76, v74, v75, v76\nv_max_f32 v76, v76, v77")
    def xg(op, v, t):
        A(f"v_mov_b32 {t}, {v}\nv_permlane16_swap_b32 {v}, {t}\n{op} {v}, {v}, {t}\nv_mov_b32 {t}, {v}\nv_permlane32_swap_b32 {v}, {t}\n{op} {v}, {v}, {t}")
    xg("v_max_f32", "v76", "v77")
    A("ds_write_b32 v11, v76")
    arrive(Z_CB)
    A(f"v_lshrrev_b32 v18, 2, {vN}\nv_lshl_add_u32 v19, {vG}, 2, v18\nv_and_b32 v18, 7, v19\nv_xor_b32 v18, {sW}, v18\nv_lshlrev_b32 v19, 8, v19\nv_lshl_add_u32 v19, v18, 5, v19\nv_lshl_add_u32 v19, v17, 3, v19\nv_add_u32 v19, {L_V}, v19")
    spin(Z_CB, 8)
    A("ds_read_b128 v[76:79], v12\nds_read_b128 v[80:83], v12 offset:16\ns_waitcnt lgkmcnt(0)")
    A("v_max3_f32 v76, v76, v77, v78\nv_max3_f32 v80, v80, v81, v82\nv_max3_f32 v76, v76, v79, v83\nv_max_f32 v76, v76, v80")
    A(f"s_mov_b32 {t1}, {f2u(LOG2E)}\nv_mul_f32 v84, {t1}, v76")
    for i in range(8): A(f"v_fma_f32 v{68+i}, v{68+i}, {t1}, -v84")
    for i in range(8): A(f"v_exp_f32 v{68+i}, v{68+i}")
    for i in range(4): A(f"v_cvt_pk_bf16_f32 v{76+i}, v{68+2*i}, v{69+2*i}")
    A("ds_write_b128 v16, v[76:79]")
    A("v_add_f32 v68, v68, v69\nv_add_f32 v70, v70, v71\nv_add_f32 v72, v72, v73\nv_add_f32 v74, v74, v75\nv_add_f32 v68, v68, v70\nv_add_f32 v72, v72, v74\nv_add_f32 v68, v68, v72")
    xg("v_add_f32", "v68", "v69")
    A(f"ds_write_b32 v11, v68 offset:{L_SUM-L_MAX}")
    arrive(Z_CC)
    A(f"s_lshl_b32 {t0}, {sY}, 5\ns_add_u32 {t2}, {t0}, {sJ}\ns_lshl_b32 {t0}, {t2}, 11\ns_lshl_b32 {t1}, {sW}, 6\ns_add_u32 {t0}, {t0}, {t1}\ns_add_u32 {t0}, {t0}, {WS_O}")
    A(f"v_lshlrev_b32 v18, 9, v17\nv_lshl_add_u32 v18, {vG}, 4, v18\nv_add_u32 v18, {t0}, v18")
    spin(Z_CC, 8)
    A(f"ds_read_b128 v[76:79], v12 offset:{L_SUM-L_MAX}\nds_read_b128 v[80:83], v12 offset:{L_SUM-L_MAX+16}")
    for t in range(8): A(f"ds_read_b128 {rng(20+4*t,4)}, v15 offset:{256*t}")
    A("s_waitcnt lgkmcnt(8)")
    A("v_add_f32 v76, v76, v77\nv_add_f32 v78, v78, v79\nv_add_f32 v80, v80, v81\nv_add_f32 v82, v82, v83\nv_add_f32 v76, v76, v78\nv_add_f32 v80, v80, v82\nv_add_f32 v76, v76, v80")
    A("v_log_f32 v77, v76\nv_rcp_f32 v85, v76\nv_add_f32 v84, v84, v77")
    A(f"s_cmp_lg_u32 {sW}, 0\ns_cbranch_scc1 L_nolse")
    tag(88, 84); A("v_mov_b32 v89, v88\nv_mov_b32 v90, v88\nv_mov_b32 v91, v88")
    A(f"s_lshl_b32 {t0}, {t2}, 6\ns_add_u32 {t0}, {t0}, {WS_LSE}\nv_lshlrev_b32 v11, 4, v17\nv_add_u32 v11, {t0}, v11\ns_mov_b64 exec, 15")
    store_local(f"global_store_dwordx4 v11, v[88:91], {sWS}")
    A("s_mov_b64 exec, -1")
    A("L_nolse:")
    A("s_waitcnt lgkmcnt(0)")
    stamp(6)
    A("s_barrier")
    stamp(7)
    for t in range(8):
        A(f"ds_read_b64_tr_b16 {rng(52+4*t,2)}, v19 offset:{8192*t}\nds_read_b64_tr_b16 {rng(54+4*t,2)}, v19 offset:{8192*t+4096}")
    for t in range(8):
        A(f"s_waitcnt lgkmcnt({14-2*t})")
        A(f"v_mfma_f32_16x16x32_bf16 v[88:91], {rng(52+4*t,4)}, {rng(20+4*t,4)}, {'0' if t==0 else 'v[88:91]'}")
    A("s_mov_b32 exec_lo, 0x000f000f\ns_mov_b32 exec_hi, 0x000f000f")
    for i in range(4): A(f"v_mul_f32 v{88+i}, v{88+i}, v85")
    for i in range(4): tag(88+i, 88+i)
    store_local(f"global_store_dwordx4 v18, v[88:91], {sWS}")
    A("s_mov_b64 exec, -1")
    stamp(8)
    A(f"s_cmp_ge_u32 {sSP}, 2\ns_cbranch_scc1 L_notop")

    A(f"s_lshl_b32 {t0}, {sSP}, 1\ns_lshr_b32 {t1}, {sW}, 2\ns_add_u32 {t2}, {t0}, {t1}")
    A(f"s_lshl_b32 {t0}, {sY}, 16\ns_lshl_b32 {t1}, {t2}, 9\ns_add_u32 {t0}, {t0}, {t1}\ns_and_b32 {t1}, {sW}, 3\ns_lshl_b32 {t1}, {t1}, 7\ns_add_u32 {t0}, {t0}, {t1}\ns_add_u32 {t0}, {t0}, {WS_O}")
    A(f"v_and_b32 v16, 7, {vN}\nv_lshrrev_b32 v17, 3, {vN}\nv_lshl_add_u32 v17, v16, 1, v17")
    A(f"v_lshlrev_b32 v11, 12, v17\nv_lshl_add_u32 v11, {vG}, 5, v11\nv_add_u32 v11, {t0}, v11")
    A(f"s_lshl_b32 {t0}, {sY}, 11\ns_lshl_b32 {t1}, {t2}, 4\ns_add_u32 {t0}, {t0}, {t1}\ns_add_u32 {t0}, {t0}, {WS_LSE}\nv_lshlrev_b32 v12, 7, v17\nv_add_u32 v12, {t0}, v12")
    def op_loads():
        A(f"global_load_dwordx4 v[84:87], v12, {sWS} sc1\nglobal_load_dwordx4 v[88:91], v12, {sWS} offset:64 sc1")
        A(f"global_load_dwordx4 v[92:95], v11, {sWS} sc1\nglobal_load_dwordx4 v[96:99], v11, {sWS} offset:16 sc1")
        A(f"global_load_dwordx4 v[100:103], v11, {sWS} offset:2048 sc1\nglobal_load_dwordx4 v[104:107], v11, {sWS} offset:2064 sc1")
    op_loads()
    A(f"v_lshlrev_b32 v15, 4, v16\nv_lshl_add_u32 v15, {vG}, 7, v15\nv_add_u32 v15, {L_XN}, v15\ns_lshl_b32 {t0}, {sW}, 9\nv_add_u32 v18, {t0}, v15")
    A(f"v_lshrrev_b32 v17, 3, {vN}\nv_lshl_add_u32 v15, v17, 9, v15")
    A(f"s_lshl_b32 {t0}, {sB}, 15\ns_lshl_b32 {t1}, {sY}, 10\ns_add_u32 {t0}, {t0}, {t1}\ns_lshl_b32 {t1}, {sSP}, 9\ns_add_u32 {t0}, {t0}, {t1}\ns_and_b32 {t1}, {sW}, 3\ns_lshl_b32 {t1}, {t1}, 7\ns_add_u32 {t0}, {t0}, {t1}\ns_add_u32 {t0}, {t0}, {WS_A}")
    A(f"v_lshrrev_b32 v17, 1, v16\nv_lshlrev_b32 v17, 13, v17\nv_and_b32 v16, 1, v16\nv_lshl_add_u32 v17, v16, 6, v17\nv_lshl_add_u32 v17, {vG}, 4, v17\nv_add_u32 v17, {t0}, v17")
    A("s_barrier")
    A(f"s_cmp_lt_u32 {sW}, 4\ns_cbranch_scc1 L_opchk")
    for k in range(8):
        A(f"ds_read_b64_tr_b16 {rng(20+4*k,2)}, {vTA} offset:{4096*k}\nds_read_b64_tr_b16 {rng(22+4*k,2)}, {vTA} offset:{4096*k+512}")
    A("s_branch L_opchk")
    A("L_oppoll:")
    op_loads()
    A("L_opchk:")
    A("s_waitcnt vmcnt(0)")
    check(range(84, 108), "v16"); check_end("v16", "L_oppoll")
    stamp(9)
    ror8 = "row_ror:8 row_mask:0xf bank_mask:0xf"
    A(f"v_max_f32 v85, v84, v88\nv_max_f32_dpp v85, v85, v85 {ror8}\nv_sub_f32 v84, v84, v85\nv_sub_f32 v88, v88, v85\nv_exp_f32 v84, v84\nv_exp_f32 v88, v88")
    A(f"v_add_f32 v85, v84, v88\nv_add_f32_dpp v85, v85, v85 {ror8}\nv_rcp_f32 v85, v85\nv_mul_f32 v84, v84, v85\nv_mul_f32 v88, v88, v85")
    for i in range(8): A(f"v_mul_f32 v{92+i}, v{92+i}, v84")
    for i in range(8): A(f"v_fmac_f32 v{92+i}, v{100+i}, v88")
    for i in range(8): A(f"v_add_f32_dpp v{92+i}, v{92+i}, v{92+i} {ror8}")
    for i in range(4): A(f"v_cvt_pk_bf16_f32 v{92+i}, v{92+2*i}, v{93+2*i}")
    A("ds_write_b128 v18, v[92:95]\ns_waitcnt lgkmcnt(0)\ns_barrier")
    A(f"s_cmp_lt_u32 {sW}, 4\ns_cbranch_scc1 L_reduce")
    for u in range(4): A(f"ds_read_b128 {rng(52+4*u,4)}, v15 offset:{1024*u}")
    for u in range(4):
        A(f"s_waitcnt lgkmcnt({3-u})")
        A(f"v_mfma_f32_16x16x32_bf16 v[84:87], {rng(20+8*u,4)}, {rng(52+4*u,4)}, {'0' if u==0 else 'v[84:87]'}")
        A(f"v_mfma_f32_16x16x32_bf16 v[88:91], {rng(24+8*u,4)}, {rng(52+4*u,4)}, {'0' if u==0 else 'v[88:91]'}")
    for i in range(4): A(f"v_add_f32_dpp v{84+i}, v{88+i}, v{84+i} {ror8}")
    for i in range(4): tag(84+i, 84+i)
    A(f"s_mov_b32 exec_lo, {MASK_N8[0]}\ns_mov_b32 exec_hi, {MASK_N8[1]}\nglobal_store_dwordx4 v17, v[84:87], {sWS} sc1\ns_mov_b64 exec, -1")
    stamp(10)
    A("s_branch L_final")

    A("L_notop:")
    A(f"s_cmp_lt_u32 {sW}, 4\ns_cbranch_scc1 L_reduce")
    A(f"s_cmp_eq_u32 {sB}, 7\ns_cbranch_scc1 L_exit")
    A(f"s_and_b32 {t2}, {sW}, 3")
    A(f"s_mov_b32 s40, s16\ns_mov_b32 s41, s17\ns_mov_b32 s42, {512*1792*2}\ns_mov_b32 s43, 0x20000")
    A(f"s_mov_b32 s56, s20\ns_mov_b32 s57, s21\ns_mov_b32 s58, {512*1792*2}\ns_mov_b32 s59, 0x20000")
    A(f"v_lshrrev_b32 v11, 1, {vL}\nv_mul_u32_u24 v11, 3584, v11\nv_and_b32 v12, 1, {vL}\nv_lshl_add_u32 v11, v12, 4, v11")
    A(f"s_mul_i32 {t0}, {t2}, {128*3584}\ns_lshl_b32 {t1}, s52, 5\ns_add_u32 {t0}, {t0}, {t1}\ns_lshl_b32 {t3}, {t2}, 13")
    for i in range(4):
        A(f"s_add_u32 m0, {t3}, {1024*i}\nbuffer_load_dwordx4 v11, s[40:43], {t0} offen nt lds\ns_add_u32 {t0}, {t0}, {32*3584}")
    A(f"v_lshlrev_b32 v12, 1, {vG}\nv_xor_b32 v12, v12, {vN}\nv_lshlrev_b32 v12, 4, v12\nv_lshl_add_u32 v12, {vG}, 10, v12\nv_xor_b32 v15, 0x80, v12")
    A(f"s_lshl_b32 {t0}, s52, 14\ns_lshl_b32 {t1}, {t2}, 8\ns_add_u32 {t0}, {t0}, {t1}")
    for i in range(4):
        A(f"s_add_u32 m0, {t3}, {4096+1024*i}\nbuffer_load_dwordx4 {'v12' if i%2==0 else 'v15'}, s[56:59], {t0} offen nt lds\ns_add_u32 {t0}, {t0}, 4096")
    A(f"v_lshrrev_b32 v16, 2, {vN}\nv_and_b32 v17, 3, {vN}\nv_lshl_add_u32 v11, {vG}, 3, v16\nv_lshlrev_b32 v11, 5, v11\nv_lshl_add_u32 v11, v17, 3, v11\nv_add_u32 v11, {t3}, v11")
    A(f"v_lshl_add_u32 v12, {vG}, 2, v16\nv_and_b32 v15, 7, v12\nv_lshlrev_b32 v12, 8, v12\nv_lshl_add_u32 v12, v15, 5, v12\nv_lshl_add_u32 v12, v17, 3, v12\nv_add_u32 v12, {t3}, v12")
    A(f"s_lshl_b32 {t0}, {sY}, 14\ns_lshl_b32 {t1}, {t2}, 9\ns_add_u32 {t0}, {t0}, {t1}\ns_add_u32 {t0}, {t0}, {WS_H}")
    A(f"v_and_b32 v16, 7, {vN}\nv_lshrrev_b32 v17, 3, {vN}\nv_lshlrev_b32 v18, 11, v16\nv_lshl_add_u32 v18, v17, 7, v18\nv_lshl_add_u32 v18, {vG}, 5, v18\nv_add_u32 v18, {t0}, v18")
    A(f"s_mul_i32 {t0}, {t2}, {4*14336}\ns_lshl_b32 {t1}, s52, 7\ns_add_u32 {t0}, {t0}, {t1}\ns_add_u32 {t0}, {t0}, {WS_F}\ns_mov_b32 {t1}, {16*14336}")
    A(f"v_mul_lo_u32 v19, v16, {t1}\nv_lshl_add_u32 v19, v17, 6, v19\nv_lshl_add_u32 v19, {vG}, 4, v19\nv_add_u32 v19, {t0}, v19")
    for u in range(1, 4): A(f"v_add_u32 v{107+u}, {14336*u}, v19")
    A(f"v_lshl_add_u32 v13, {vG}, 3, v16\nv_lshlrev_b32 v13, 4, v13\nv_add_u32 v13, {L_Z+Z_S}, v13")
    A(f"v_lshlrev_b32 v14, 4, {vG}\nv_add_u32 v14, {L_Z+Z_C}, v14\nv_lshlrev_b32 v16, 3, v16\nv_add_u32 v16, {L_Z+Z_ST}, v16")
    A(f"v_lshlrev_b32 v15, 2, {vG}\nv_sub_u32 v15, {vN}, v15")
    for r in range(4): A(f"v_cmp_eq_u32 vcc, {r}, v15\nv_cndmask_b32 v{112+r}, 0, 1.0, vcc")
    A("v_mov_b32 v116, 0x3f803f80\nv_mov_b32 v117, 0x3f803f80\nv_mov_b32 v118, 0x3f803f80\nv_mov_b32 v119, 0x3f803f80")
    A("v_mov_b32 v100, 0\nv_mov_b32 v101, 0\nv_mov_b32 v102, 0\nv_mov_b32 v103, 0")
    A("s_waitcnt vmcnt(0)")
    stamp(9)
    for k in range(4):
        A(f"ds_read_b64_tr_b16 {rng(20+4*k,2)}, v11 offset:{1024*k}\nds_read_b64_tr_b16 {rng(22+4*k,2)}, v11 offset:{1024*k+128}")
    for t in range(8):
        A(f"v_xor_b32 v15, {32*t}, v12\nds_read_b64_tr_b16 {rng(36+2*t,2)}, v15 offset:4096")
    A("s_waitcnt lgkmcnt(0)")
    for k in range(4):
        A(f"v_mfma_f32_16x16x32_bf16 v[84:87], {rng(20+4*k,4)}, v[116:119], {'0' if k==0 else 'v[84:87]'}")
    A("s_mov_b32 exec_lo, 0x00010001\ns_mov_b32 exec_hi, 0x00010001")
    for r in range(4): A(f"ds_add_f32 v14, v{84+r} offset:{4*r}")
    A("s_mov_b64 exec, -1")
    A(f"v_lshlrev_b32 v104, 16, {vB1}\nv_and_b32 v105, 0xffff0000, {vB1}\nv_lshl_add_u32 v106, v17, 3, v13\nv_lshl_add_u32 v107, v17, 3, v14")
    A(f"s_mov_b32 {t4}, 0x07060302")
    A("L_hpoll:")
    A(f"global_load_dwordx4 v[52:55], v18, {sWS} sc1\nglobal_load_dwordx4 v[56:59], v18, {sWS} offset:16 sc1\nglobal_load_dwordx4 v[60:63], v18, {sWS} offset:256 sc1\nglobal_load_dwordx4 v[64:67], v18, {sWS} offset:272 sc1")
    A("s_waitcnt vmcnt(0)")
    check(range(52, 68), "v15"); check_end("v15", "L_hpoll")
    stamp(10)
    for i in range(8): A(f"v_perm_b32 v{68+i}, v{53+2*i}, v{52+2*i}, {t4}")
    for u in range(2):
        c = lambda a: '0' if u == 0 else rng(a, 4)
        Bf = rng(68+4*u, 4)
        A(f"v_mfma_f32_16x16x32_bf16 v[92:95], {Bf}, {Bf}, {c(92)}")
        A(f"v_mfma_f32_16x16x32_bf16 v[96:99], v[116:119], {Bf}, {c(96)}")
        A(f"v_mfma_f32_16x16x32_bf16 v[88:91], {rng(24+8*u,4)}, {Bf}, {c(88)}")
        A(f"v_mfma_f32_16x16x32_bf16 v[84:87], {rng(20+8*u,4)}, {Bf}, {c(84)}")
    A("v_mul_f32 v92, v92, v112\nv_fmac_f32 v92, v93, v113\nv_fmac_f32 v92, v94, v114\nv_fmac_f32 v92, v95, v115")
    A("s_mov_b32 exec_lo, 0x00f0000f\ns_mov_b32 exec_hi, 0xf0000f00\nds_add_f32 v16, v92 offset:4\nds_add_f32 v16, v96\ns_mov_b64 exec, -1")
    for i in range(4): A(f"v_add_f32_dpp v{84+i}, v{88+i}, v{84+i} {ror8}")
    A(f"s_mov_b32 exec_lo, {MASK_N8[0]}\ns_mov_b32 exec_hi, {MASK_N8[1]}")
    for r in range(4): A(f"ds_add_f32 v13, v{84+r} offset:{4*r}")
    A("s_mov_b64 exec, -1\ns_waitcnt lgkmcnt(0)\ns_barrier")
    A("ds_read_b64 v[52:53], v16\nds_read_b64 v[54:55], v107\nds_read_b64 v[56:57], v106\ns_waitcnt lgkmcnt(2)")
    A(f"v_mul_f32 v52, {f2u(1/512)}, v52\nv_mul_f32 v58, v52, v52\ns_mov_b32 {t0}, {f2u(1/512)}\nv_fma_f32 v53, v53, {t0}, -v58\nv_add_f32 v53, {f2u(1e-5)}, v53\nv_rsq_f32 v53, v53")
    A("s_waitcnt lgkmcnt(0)\nv_fma_f32 v56, -v52, v54, v56\nv_fma_f32 v57, -v52, v55, v57\nv_fma_f32 v56, v56, v53, v104\nv_fma_f32 v57, v57, v53, v105")
    c0 = -2*math.sqrt(2/math.pi)*LOG2E
    A(f"s_mov_b32 {t0}, {f2u(c0*0.044715)}\nv_mov_b32 v60, {f2u(c0)}")
    A(f"v_mul_f32 v58, v56, v56\nv_mul_f32 v59, v57, v57\nv_fma_f32 v58, v58, {t0}, v60\nv_fma_f32 v59, v59, {t0}, v60\nv_mul_f32 v58, v58, v56\nv_mul_f32 v59, v59, v57")
    A("v_exp_f32 v58, v58\nv_exp_f32 v59, v59\nv_add_f32 v58, 1.0, v58\nv_add_f32 v59, 1.0, v59\nv_rcp_f32 v58, v58\nv_rcp_f32 v59, v59\nv_mul_f32 v56, v56, v58\nv_mul_f32 v57, v57, v59\nv_cvt_pk_bf16_f32 v56, v56, v57")
    A("v_mov_b32_dpp v100, v56 quad_perm:[0,1,2,3] row_mask:0xf bank_mask:0x3\nv_mov_b32_dpp v101, v56 row_ror:8 row_mask:0xf bank_mask:0x3")
    A("v_mov_b32_dpp v102, v56 row_ror:8 row_mask:0xf bank_mask:0xc\nv_mov_b32_dpp v103, v56 quad_perm:[0,1,2,3] row_mask:0xf bank_mask:0xc")
    for u in range(4): A(f"v_mfma_f32_16x16x32_bf16 {rng(68+4*u,4)}, {rng(36+4*u,4)}, v[100:103], 0")
    for u in range(4):
        for i in range(4): tag(68+4*u+i, 68+4*u+i)
        A(f"global_store_dwordx4 {'v19' if u==0 else 'v%d'%(107+u)}, {rng(68+4*u,4)}, {sWS} sc1")
    stamp(11)
    A("s_branch L_exit")

    A("L_reduce:")
    A(f"s_lshl_b32 {t0}, {sSIG}, 13\ns_lshl_b32 {t1}, {sW}, 7\ns_add_u32 {t0}, {t0}, {t1}\ns_add_u32 {t0}, {t0}, {WS_A}")
    A(f"v_lshrrev_b32 v11, 3, {vL}\nv_lshlrev_b32 v11, 10, v11\nv_and_b32 v12, 7, {vL}\nv_lshl_add_u32 v11, v12, 4, v11\nv_add_u32 v11, {t0}, v11")
    A(f"s_lshl_b32 {t0}, {sY}, 14\ns_add_u32 {t0}, {t0}, {WS_H}\nv_lshlrev_b32 v14, 2, v14\nv_add_u32 v14, {t0}, v14\nv_lshlrev_b32 v13, 2, v13\nv_add_u32 v13, {L_HL}, v13")
    A(f"v_lshlrev_b32 {vXR}, 16, {vXR}")
    A("L_rpoll:")
    A(f"global_load_dwordx4 v[52:55], v11, {sWS} sc1\nglobal_load_dwordx4 v[56:59], v11, {sWS} offset:512 sc1\ns_waitcnt vmcnt(0)")
    check(range(52, 60), "v12"); check_end("v12", "L_rpoll")
    stamp(12)
    def treduce():
        for i in range(4): A(f"v_add_f32 v{52+i}, v{52+i}, v{56+i}")
        A("v_permlane32_swap_b32 v52, v53\nv_permlane32_swap_b32 v54, v55\nv_add_f32 v52, v52, v53\nv_add_f32 v54, v54, v55")
        A(f"v_permlane16_swap_b32 v52, v54\nv_add_f32 v52, v52, v54\nv_add_f32_dpp v52, v52, v52 {ror8}")
    treduce()
    rnd("v52", "v52"); A(f"v_add_f32 v52, v52, {vXR}\nv_cvt_pk_bf16_f32 v52, v52, v52\nv_lshl_or_b32 v52, v52, 16, {vT}")
    store_local(f"global_store_dword v14, v52, {sWS}")
    A("ds_write_b32 v13, v52")
    stamp(13)
    A(f"s_cmp_ge_u32 {sSP}, 2\ns_cbranch_scc1 L_exit")

    A("L_final:")
    A(f"s_lshl_b32 {t0}, s54, 4\ns_add_u32 {t0}, {t0}, s53\ns_mul_i32 {t0}, {t0}, 14336\ns_mul_i32 {t1}, {sW}, {14*128}\ns_add_u32 {t0}, {t0}, {t1}\ns_add_u32 {t0}, {t0}, {WS_F}")
    A(f"v_lshlrev_b32 v11, 4, {vL}\nv_add_u32 v11, {t0}, v11")
    A(f"v_mov_b32 v56, {vT}\nv_mov_b32 v57, {vT}\nv_mov_b32 v58, {vT}\nv_mov_b32 v59, {vT}")
    A(f"v_and_b32 v14, 1, {vG}\nv_lshrrev_b32 v15, 1, {vG}\nv_lshl_add_u32 v14, v14, 1, v15\nv_and_b32 v15, 7, {vL}\nv_lshl_add_u32 v14, v15, 2, v14\nv_lshlrev_b32 v14, 2, v14\nv_add_u32 v14, {L_Z+Z_OUT}, v14")
    A(f"s_and_b32 {t0}, {sY}, 1\ns_lshl_b32 {t0}, {t0}, 8\ns_bfe_u32 {t1}, {sY}, 0x10001\ns_lshl_b32 {t1}, {t1}, 7\ns_add_u32 {t0}, {t0}, {t1}\ns_add_u32 {t0}, {t0}, {L_HL}")
    A(f"v_lshlrev_b32 v15, 3, {vN}\nv_add_u32 v16, {t0}, v15\nv_add_u32 v15, {L_Z+Z_OUT}, v15")
    A(f"s_lshl_b32 {t0}, s54, 10\ns_lshl_b32 {t1}, s53, 6\ns_add_u32 {t0}, {t0}, {t1}\nv_lshlrev_b32 v17, 2, {vN}\nv_add_u32 v17, {t0}, v17")
    A(f"v_lshlrev_b32 v18, 16, {vB2}\nv_and_b32 v19, 0xffff0000, {vB2}")
    A("L_fpoll:")
    A(f"global_load_dwordx4 v[52:55], v11, {sWS} sc1\ns_mov_b32 exec_hi, 0xffff\nglobal_load_dwordx4 v[56:59], v11, {sWS} offset:1024 sc1\ns_mov_b32 exec_hi, -1\ns_waitcnt vmcnt(0)")
    check(range(52, 60), "v12"); check_end("v12", "L_fpoll")
    stamp(14)
    treduce()
    A(f"s_mov_b32 exec_lo, {MASK_N8[0]}\ns_mov_b32 exec_hi, {MASK_N8[1]}\nds_add_f32 v14, v52\ns_mov_b64 exec, -1\ns_waitcnt lgkmcnt(0)\ns_barrier")
    A(f"s_cmp_lg_u32 {sW}, 0\ns_cbranch_scc1 L_exit")
    A("ds_read_b64 v[52:53], v15\nds_read_b64 v[54:55], v16\ns_waitcnt lgkmcnt(1)")
    A("v_cvt_pk_bf16_f32 v53, v52, v53\nv_lshlrev_b32 v52, 16, v53\nv_and_b32 v53, 0xffff0000, v53\nv_add_f32 v52, v52, v18\nv_add_f32 v53, v53, v19")
    A("v_cvt_pk_bf16_f32 v53, v52, v53\nv_lshlrev_b32 v52, 16, v53\nv_and_b32 v53, 0xffff0000, v53\ns_waitcnt lgkmcnt(0)")
    A(f"v_and_b32 v54, 0xffff0000, v54\nv_and_b32 v55, 0xffff0000, v55\nv_add_f32 v52, v52, v54\nv_add_f32 v53, v53, v55\nv_cvt_pk_bf16_f32 v52, v52, v53")
    A(f"s_mov_b64 exec, 0xffff\nglobal_store_dword v17, v52, {sOUT}")
    A(f"s_cmp_lg_u32 s2, 0\ns_cbranch_scc1 L_exit")
    A(f"v_mov_b32 v11, {WS_E}\nv_mov_b32 v12, {sE}\ns_mov_b64 exec, 1\nglobal_store_dword v11, v12, {sWS}")
    A("s_branch L_exit")

    A("L_loader:")
    for i in range(4):
        A(f"v_add_u32 v11, {4*i}, {vG}\nv_xor_b32 v11, v11, {vN}\nv_lshlrev_b32 v11, 4, v11\nv_lshl_add_u32 v{20+i}, {vG}, 8, v11")
    A(f"v_lshlrev_b32 v11, 1, {vG}\nv_xor_b32 v11, v11, {vN}\nv_lshlrev_b32 v11, 4, v11\nv_lshl_add_u32 v24, {vG}, 8, v11\nv_xor_b32 v25, 0x80, v24")
    A(f"v_and_b32 v11, 1, {vG}\nv_lshlrev_b32 v11, 1, v11\nv_and_b32 v12, 7, {vL}\nv_xor_b32 v11, v11, v12\nv_lshlrev_b32 v11, 4, v11\nv_lshrrev_b32 v12, 3, {vL}")
    A("v_lshl_add_u32 v26, v12, 13, v11\nv_xor_b32 v27, 64, v26\nv_lshl_add_u32 v28, v12, 10, v11\nv_xor_b32 v29, 64, v28")
    A(f"s_lshl_b32 {t0}, {sSP}, 20\ns_lshl_b32 {t1}, {sY}, 10\ns_add_u32 {t0}, {t0}, {t1}\ns_lshl_b32 {t1}, {sB}, 7\ns_add_u32 {t0}, {t0}, {t1}")
    A(f"s_lshl_b32 {t2}, {sB}, 3\ns_add_u32 {t2}, {t2}, {sY}\ns_lshl_b32 {t2}, {t2}, 20\ns_lshl_b32 {t1}, {sSP}, 16\ns_add_u32 {t2}, {t2}, {t1}\ns_add_u32 {t2}, {t2}, 0xc0000")
    A(f"s_mov_b32 s42, {4<<20}\ns_mov_b32 s43, 0x20000\ns_mov_b32 s58, {64<<20}\ns_mov_b32 s59, 0x20000\ns_mov_b32 {t3}, {L_WQ}")
    A("s_waitcnt lgkmcnt(0)")
    A("s_mov_b32 s40, s10\ns_mov_b32 s41, s11\ns_mov_b32 s56, s6\ns_mov_b32 s57, s7")
    def wtile(lab, va, vb, step, end, pace):
        A(f"{lab}:\ns_mov_b32 m0, {t3}\ns_add_u32 {t3}, {t3}, 1024\nbuffer_load_dwordx4 {va}, s[40:43], {t0} offen nt lds\ns_add_u32 {t0}, {t0}, {step}")
        A(f"s_mov_b32 m0, {t3}\ns_add_u32 {t3}, {t3}, 1024\nbuffer_load_dwordx4 {vb}, s[40:43], {t0} offen nt lds\ns_add_u32 {t0}, {t0}, {step}")
        if pace is not None: A(f"s_waitcnt vmcnt({pace})")
        A(f"s_cmp_lt_u32 {t3}, {end}\ns_cbranch_scc1 {lab}")
    wtile("L_ldwq", "v26", "v27", 8*8192, L_WQ+16384, None)
    A("s_barrier")
    def kvloop(lab, regs, lds0, flag, flagbytes):
        A(f"s_mov_b32 {t3}, {lds0}\ns_mov_b32 {t4}, {t2}\n{lab}:\ns_mov_b32 m0, {t3}\ns_add_u32 {t3}, {t3}, 4096")
        for i in range(4): A(f"buffer_load_dwordx4 {regs[i]}, s[56:59], {t4} offen offset:{1024*i} nt lds")
        A(f"s_add_u32 {t4}, {t4}, 4096\ns_waitcnt vmcnt({win})")
        sk = U("nf")
        A(f"s_cmp_lg_u32 {t3}, {lds0+flagbytes}\ns_cbranch_scc1 {sk}\nds_write_b32 {vZ}, {vOne} offset:{flag}\n{sk}:")
        A(f"s_cmp_lt_u32 {t3}, {lds0+65536}\ns_cbranch_scc1 {lab}")
    assert win % 4 == 0
    kvloop("L_ldk", ["v20", "v21", "v22", "v23"], L_K, Z_FXW, win*1024)
    if stamps: A("s_memrealtime s[66:67]")
    A("s_mov_b32 s56, s8\ns_mov_b32 s57, s9")
    kvloop("L_ldv", ["v24", "v25", "v24", "v25"], L_V, Z_FK, win*1024)
    if stamps: A("s_memrealtime s[68:69]")
    A(f"s_cmp_lt_u32 {sSP}, 2\ns_cbranch_scc1 L_ldwo")
    A("s_waitcnt vmcnt(0)")
    if stamps: A("s_memrealtime s[70:71]")
    A("s_barrier\ns_branch L_exit")
    A("L_ldwo:")
    spin(Z_KCONS, 8)
    A(f"s_mov_b32 s40, s12\ns_mov_b32 s41, s13\ns_lshl_b32 {t0}, {sY}, 19\ns_lshl_b32 {t1}, {sSP}, 18\ns_add_u32 {t0}, {t0}, {t1}\ns_lshl_b32 {t1}, {sB}, 7\ns_add_u32 {t0}, {t0}, {t1}\ns_mov_b32 {t3}, 0")
    wo1 = opt.get("wo1", win)
    wtile("L_ldwo1", "v28", "v29", 8192, wo1*1024, win)
    A(f"s_waitcnt vmcnt({wo1})")
    if stamps: A("s_memrealtime s[70:71]")
    A("s_barrier")
    if wo1 < 32: wtile("L_ldwo2", "v28", "v29", 8192, 32768, None)
    A("s_waitcnt vmcnt(0)")
    if stamps: A("s_memrealtime s[72:73]")
    A("s_barrier")
    A("L_exit:")
    if stamps:
        A("s_memrealtime s[94:95]\ns_mov_b64 exec, -1\ns_waitcnt lgkmcnt(0)")
        A(f"s_lshl_b32 {t0}, s2, 4\ns_add_u32 {t0}, {t0}, {sW}\ns_lshl_b32 {t0}, {t0}, 6\ns_add_u32 {t0}, {t0}, {WS_STAMP}\nv_mov_b32 v11, {t0}")
        for q in range(4):
            for i in range(4): A(f"v_mov_b32 v{52+i}, s{64+2*(4*q+i)}")
            A(f"global_store_dwordx4 v11, v[52:55], {sWS} offset:{16*q}")
    A("L_end:\ns_endpgm")
    body, npad = pad_hazards(A.L + tail.L)
    nv = 120
    out = HEADER + f"; @launch grid=(256,1,1) block=(576,1,1) lds={LDS_BYTES}\n"
    out += f'.amdgcn_target "amdgcn-amd-amdhsa--gfx950"\n.text\n.globl {KNAME}\n.p2align 8\n.type {KNAME},@function\n{KNAME}:\n'
    out += "\n".join(("" if l.endswith(":") else "    ") + l for l in body) + "\n"
    out += f""".section .rodata,"a"
.p2align 6
.amdhsa_kernel {KNAME}
  .amdhsa_next_free_vgpr {nv}
  .amdhsa_next_free_sgpr 96
  .amdhsa_accum_offset {nv}
  .amdhsa_group_segment_fixed_size 0
  .amdhsa_kernarg_size 104
  .amdhsa_user_sgpr_count 2
  .amdhsa_user_sgpr_kernarg_segment_ptr 1
  .amdhsa_system_sgpr_workgroup_id_x 1
.end_amdhsa_kernel
"""
    return out

if __name__ == "__main__":
    open("sequential_preLN__sliding_block_cached__dense_activation_gelu__decode.s", "w").write(gen())
    open("k_stamps.s", "w").write(gen(stamps=True))
```

```python
import sys, math, struct
from asmlib import Asm, pad_hazards

KNAME = "sequential_preLN__sliding_block_cached__dense_activation_gelu__decode_kernel"
HEADER = open("sequential_preLN__sliding_block_cached__dense_activation_gelu__decode.s.ref").read().split("; Override launch")[0]

def f2u(x): return "0x%08x" % struct.unpack("<I", struct.pack("<f", x))[0]

WS_E, WS_XCC, WS_LSE, WS_H, WS_A, WS_Q, WS_O, WS_F, WS_STAMP = 0, 0x1000, 0x4000, 0x10000, 0x40000, 0x80000, 0x100000, 0x200000, 0x1000000
L_K, L_V, L_WQ, L_XN, L_Q, L_P, L_MAX, L_SUM, L_HL, L_Z = 0, 65536, 131072, 147456, 155776, 157056, 159104, 159232, 159360, 159872
Z_CA, Z_CB, Z_CC, Z_QRDY, Z_KCONS, Z_FXW, Z_FK, Z_LOCAL, Z_FV = 0, 4, 8, 12, 16, 20, 24, 28, 32
Z_OUT, Z_C, Z_ST, Z_S = 128, 256, 320, 512
LDS_BYTES = 163840
MASK_N8 = ("0x00ff00ff", "0x00ff00ff")
LOG2E = math.log2(math.e)

def gen(stamps=False, win=20, opt=None):
    opt = opt or {}
    A = Asm()
    uid = [0]
    def U(p): uid[0] += 1; return f"{p}_{uid[0]}"
    tail = Asm()
    sX, sK, sV, sWQ, sWO, sW1, sB1, sW2, sB2, sOUT, sWS = "s[4:5]", "s[6:7]", "s[8:9]", "s[10:11]", "s[12:13]", "s[16:17]", "s[18:19]", "s[20:21]", "s[22:23]", "s[24:25]", "s[28:29]"
    sE, sT, sW, sY, sJ, sB, sSP, sTO, sLOC, sF, sSIG, sM8 = "s30", "s31", "s32", "s33", "s34", "s35", "s36", "s37", "s38", "s39", "s44", "s45"
    t0, t1, t2, t3, t4, t5 = "s46", "s47", "s48", "s49", "s50", "s51"
    vL, vN, vG, vT, vZ, vOne, vTA, vS, vXR, vB1, vB2 = "v0", "v1", "v2", "v3", "v4", "v5", "v6", "v7", "v8", "v9", "v10"
    nst = [0]
    def stamp(k):
        if stamps: A(f"s_memrealtime s[{64+2*k}:{65+2*k}]\ns_waitcnt lgkmcnt(0)")
    def spin(off, n, sleep=0):
        l, d = U("spin"), U("done")
        A(f"{l}:\nds_read_b32 {vS}, {vZ} offset:{off}\ns_waitcnt lgkmcnt(0)\nv_readfirstlane_b32 {t0}, {vS}")
        A(f"s_cmp_ge_u32 {t0}, {n}\ns_cbranch_scc1 {d}")
        if sleep: A(f"s_sleep {sleep}")
        A(f"s_sub_u32 {sTO}, {sTO}, 1\ns_cbranch_scc0 {l}\ns_branch L_exit\n{d}:")
    def arrive(off):
        A(f"s_waitcnt lgkmcnt(0)\ns_mov_b64 exec, 1\nds_add_u32 {vZ}, {vOne} offset:{off}\ns_mov_b64 exec, -1")
    def wave_sum(v, s):
        for m in ("quad_perm:[1,0,3,2] row_mask:0xf", "quad_perm:[2,3,0,1] row_mask:0xf", "row_half_mirror row_mask:0xf", "row_mirror row_mask:0xf",
                  "row_bcast:15 row_mask:0xa", "row_bcast:31 row_mask:0xc"):
            A(f"v_add_f32_dpp {v}, {v}, {v} {m} bank_mask:0xf")
        A(f"v_readlane_b32 {s}, {v}, 63")
    def rnd(d, a):
        A(f"v_cvt_pk_bf16_f32 {d}, {a}, {a}\nv_lshlrev_b32 {d}, 16, {d}")
    def check(regs, acc, first=True):
        for i, r in enumerate(regs):
            if i == 0 and first: A(f"v_xor_b32 {acc}, {sT}, v{r}")
            else: A(f"v_bitop3_b32 {acc}, {acc}, v{r}, {sT} bitop3:0xf6")
    def check_end(acc, loop):
        d = U("ok")
        A(f"v_and_b32 {acc}, 0xff, {acc}\nv_cmp_ne_u32 vcc, 0, {acc}\ns_cbranch_vccz {d}")
        A(f"s_sub_u32 {sTO}, {sTO}, 1\ns_cbranch_scc0 {loop}\ns_branch L_exit\n{d}:")
    def tag(d, s):
        A(f"v_and_or_b32 v{d}, v{s}, {sM8}, {vT}")
    def store_local(text):
        s, b = U("slow"), U("back")
        A(f"s_cmp_eq_u32 {sLOC}, 0\ns_cbranch_scc1 {s}\n{text}\n{b}:")
        tail(f"{s}:\n" + "\n".join(l + " sc1" for l in text.split("\n")) + f"\ns_branch {b}")
    def rng(a, n): return f"v[{a}:{a+n-1}]"

    A(f"s_cmp_ge_u32 s2, 256\ns_cbranch_scc1 L_end")
    A("s_load_dwordx16 s[4:19], s[0:1], 0\ns_load_dwordx8 s[20:27], s[0:1], 64\ns_load_dwordx2 s[28:29], s[0:1], 96")
    if stamps:
        A("s_memrealtime s[64:65]")
        for k in range(1, 16): A(f"s_mov_b32 s{64+2*k}, 0")
    A(f"v_lshrrev_b32 v1, 6, v0\nv_and_b32 {vL}, 63, v0\nv_readfirstlane_b32 {sW}, v1")
    A(f"s_and_b32 {sY}, s2, 7\ns_lshr_b32 {sJ}, s2, 3\ns_lshr_b32 {sB}, s2, 5\ns_and_b32 {sSP}, {sJ}, 3")
    A(f"s_mov_b32 {sTO}, 0x80000\ns_mov_b32 {sM8}, 0xffffff00")
    A(f"v_and_b32 {vN}, 15, {vL}\nv_lshrrev_b32 {vG}, 4, {vL}\nv_mov_b32 {vZ}, {L_Z}\nv_mov_b32 {vOne}, 1")
    A(f"s_cmp_eq_u32 {sW}, 8\ns_cbranch_scc1 L_loader")

    A(f"s_lshl_b32 {t0}, {sW}, 10\nv_lshlrev_b32 v11, 4, {vL}\nv_add_u32 v12, {L_Z}, v11\nv_add_u32 v11, {t0}, v11")
    A("v_mov_b32 v20, 0\nv_mov_b32 v21, 0\nv_mov_b32 v22, 0\nv_mov_b32 v23, 0")
    A("ds_write_b128 v12, v[20:23]")
    A(f"s_and_b32 {t0}, {sSP}, 1\ns_lshl_b32 {sF}, {sB}, 1\ns_add_u32 {sF}, {sF}, {t0}")
    A(f"s_lshr_b32 {t0}, {sSP}, 1\ns_lshr_b32 {t1}, {sY}, 2\ns_xor_b32 {t0}, {t0}, {t1}\ns_lshl_b32 {t0}, {t0}, 4\ns_add_u32 {sSIG}, {sF}, {t0}")
    A(f"s_and_b32 {t2}, {sW}, 3")
    A(f"v_and_b32 v14, 1, {vG}\nv_lshrrev_b32 v15, 1, {vG}\nv_lshl_add_u32 v14, v14, 1, v15")
    A(f"v_and_b32 v15, 3, {vL}\nv_lshl_add_u32 v14, v15, 2, v14\ns_lshl_b32 {t0}, {t2}, 4\nv_add_u32 v14, {t0}, v14")
    A(f"v_bfe_u32 v15, {vL}, 2, 1")
    A(f"v_lshl_add_u32 v13, v15, 6, v14")
    A(f"s_and_b32 {t0}, {sSIG}, 3\ns_lshl_b32 {t0}, {t0}, 10\ns_lshr_b32 {t1}, {sSIG}, 2\ns_lshl_b32 {t1}, {t1}, 6\ns_add_u32 {t0}, {t0}, {t1}")
    A(f"v_lshl_add_u32 v14, v15, 9, v14\nv_add_u32 v14, {t0}, v14")
    A(f"v_lshlrev_b32 v15, 1, v14")
    A(f"s_min_u32 {t0}, {sF}, 13\ns_mul_i32 {t1}, {sY}, 14\ns_add_u32 {t3}, {t0}, {t1}")
    A(f"s_mov_b32 s52, {t3}")
    A(f"s_lshl_b32 {t0}, {t3}, 5\nv_lshrrev_b32 v16, 3, {vN}\nv_lshlrev_b32 v16, 2, v16\nv_lshl_add_u32 v16, {vG}, 3, v16\nv_add_u32 v16, {t0}, v16")
    A(f"s_lshr_b32 {t0}, {sSIG}, 2\ns_lshl_b32 {t0}, {t0}, 1\ns_bfe_u32 {t1}, {sY}, 0x10001\ns_add_u32 s53, {t0}, {t1}")
    A(f"s_and_b32 {t0}, {sSIG}, 3\ns_lshl_b32 {t0}, {t0}, 1\ns_and_b32 {t1}, {sY}, 1\ns_add_u32 s54, {t0}, {t1}")
    A(f"s_lshl_b32 {t0}, s53, 6\nv_lshlrev_b32 v17, 2, {vN}\nv_add_u32 v17, {t0}, v17")
    A("s_waitcnt lgkmcnt(0)")
    A(f"global_load_dwordx4 v[52:55], v11, {sX}")
    A(f"global_load_ushort {vXR}, v15, {sX}\nglobal_load_dword {vB1}, v16, {sB1}\nglobal_load_dword {vB2}, v17, {sB2}")
    A(f"s_load_dword {sE}, {sWS}, {WS_E}")
    A("s_barrier")
    A(f"v_lshrrev_b32 v18, 2, {vN}\nv_lshl_add_u32 v19, {vG}, 3, v18\nv_lshlrev_b32 v19, 7, v19\nv_lshrrev_b32 v18, 1, v18")
    A(f"v_and_b32 v12, 1, {vG}\nv_lshl_add_u32 v18, v12, 1, v18\nv_xor_b32 v18, {t2}, v18\nv_lshl_add_u32 v19, v18, 5, v19")
    A(f"v_and_b32 v12, 3, {vN}\nv_lshl_add_u32 {vTA}, v12, 3, v19")
    A("s_waitcnt vmcnt(3)")
    stamp(1)
    X = list(range(56, 64))
    for i in range(4):
        A(f"v_lshlrev_b32 v{X[2*i]}, 16, v{52+i}\nv_and_b32 v{X[2*i+1]}, 0xffff0000, v{52+i}")
    A(f"v_add_f32 v64, v56, v57\nv_add_f32 v65, v58, v59\nv_add_f32 v66, v60, v61\nv_add_f32 v67, v62, v63\nv_add_f32 v64, v64, v65\nv_add_f32 v66, v66, v67\nv_add_f32 v64, v64, v66")
    wave_sum("v64", t0)
    A(f"v_mov_b32 v65, {f2u(1/512)}\nv_mul_f32 v64, {t0}, v65")
    for i in range(8): A(f"v_sub_f32 v{68+i}, v{X[i]}, v64")
    A("v_mul_f32 v66, v68, v68")
    for i in range(1, 8): A(f"v_fmac_f32 v66, v{68+i}, v{68+i}")
    wave_sum("v66", t0)
    rnd("v64", "v64")
    A(f"v_mul_f32 v66, {t0}, v65")
    rnd("v66", "v66"); A(f"v_add_f32 v66, {f2u(1e-5)}, v66"); rnd("v66", "v66")
    A("v_sqrt_f32 v66, v66"); rnd("v66", "v66"); A("v_rcp_f32 v66, v66")
    for i in range(8): A(f"v_sub_f32 v{68+i}, v{X[i]}, v64")
    for i in range(4):
        A(f"v_cvt_pk_bf16_f32 v{52+i}, v{68+2*i}, v{69+2*i}")
    for i in range(4):
        A(f"v_lshlrev_b32 v{68+2*i}, 16, v{52+i}\nv_and_b32 v{69+2*i}, 0xffff0000, v{52+i}")
    for i in range(8): A(f"v_mul_f32 v{68+i}, v{68+i}, v66")
    for i in range(4):
        A(f"v_cvt_pk_bf16_f32 v{52+i}, v{68+2*i}, v{69+2*i}")
    A(f"s_mul_i32 {t0}, {sW}, 1040\ns_add_u32 {t0}, {t0}, {L_XN}\nv_lshlrev_b32 v11, 4, {vL}\nv_add_u32 v11, {t0}, v11")
    A("ds_write_b128 v11, v[52:55]")
    arrive(Z_CA)
    A(f"s_add_u32 {sE}, {sE}, 1\ns_and_b32 {sT}, {sE}, 0xff\nv_mov_b32 {vT}, {sT}")
    A(f"s_cmp_ge_u32 {sW}, 4\ns_cbranch_scc1 L_kwait")
    A(f"v_and_b32 v11, 7, {vN}\nv_mul_u32_u24 v11, 1040, v11\nv_lshl_add_u32 v11, {vG}, 4, v11\ns_lshl_b32 {t0}, {sSP}, 8\ns_add_u32 {t0}, {t0}, {L_XN}\nv_add_u32 v11, {t0}, v11")
    A(f"v_add_u32 v12, {L_WQ}, {vTA}")
    A(f"s_lshl_b32 {t0}, {sY}, 16\ns_lshl_b32 {t1}, {sSP}, 11\ns_add_u32 {t0}, {t0}, {t1}\ns_lshl_b32 {t1}, {sB}, 8\ns_add_u32 {t0}, {t0}, {t1}\ns_lshl_b32 {t1}, {sW}, 6\ns_add_u32 {t0}, {t0}, {t1}\ns_add_u32 {t0}, {t0}, {WS_Q}")
    A(f"v_lshlrev_b32 v15, 13, {vN}\nv_lshl_add_u32 v15, {vG}, 4, v15\nv_add_u32 v15, {t0}, v15")
    spin(Z_CA, 8)
    for k in range(4): A(f"ds_read_b128 {rng(68+4*k,4)}, v11 offset:{64*k}")
    spin(Z_FXW, 1)
    stamp(2)
    for k in range(4):
        A(f"ds_read_b64_tr_b16 {rng(52+4*k,2)}, v12 offset:{4096*k}\nds_read_b64_tr_b16 {rng(54+4*k,2)}, v12 offset:{4096*k+512}")
    for k in range(4):
        A(f"s_waitcnt lgkmcnt({6-2*k})")
        A(f"v_mfma_f32_16x16x32_bf16 v[84:87], {rng(52+4*k,4)}, {rng(68+4*k,4)}, {'0' if k==0 else 'v[84:87]'}")
    for i in range(4): tag(84+i, 84+i)
    A(f"s_mov_b32 exec_lo, {MASK_N8[0]}\ns_mov_b32 exec_hi, {MASK_N8[1]}")
    A(f"global_store_dwordx4 v15, v[84:87], {sWS} sc1\ns_mov_b64 exec, -1")
    A(f"s_cmp_eq_u32 {sW}, 3\ns_cbranch_scc1 L_kwait")
    A(f"s_cmp_eq_u32 {sW}, 2\ns_cbranch_scc1 L_xcc")
    A(f"s_lshl_b32 {t0}, {sY}, 3\ns_add_u32 {t0}, {t0}, {sB}\ns_lshl_b32 {t0}, {t0}, 13\ns_lshl_b32 {t1}, {sW}, 10\ns_add_u32 {t0}, {t0}, {t1}\ns_add_u32 {t0}, {t0}, {WS_Q+4096}")
    A(f"v_lshlrev_b32 v15, 4, {vL}\nv_add_u32 v15, {t0}, v15")
    A(f"s_mul_i32 {t0}, {sW}, 640\ns_add_u32 {t0}, {t0}, {L_Q}\nv_lshrrev_b32 v11, 5, {vL}\nv_mul_u32_u24 v11, 320, v11\nv_and_b32 v12, 31, {vL}\nv_lshl_add_u32 v11, v12, 3, v11\nv_add_u32 v11, {t0}, v11")
    A("s_waitcnt vmcnt(0)")
    stamp(3)
    A("L_qpoll:")
    for k in range(4): A(f"global_load_dwordx4 {rng(84+4*k,4)}, v15, {sWS} offset:{2048*k-4096} sc1")
    A("s_waitcnt vmcnt(0)")
    check(range(84, 100), "v12"); check_end("v12", "L_qpoll")
    for i in range(4): A(f"v_add_f32 v{84+i}, v{84+i}, v{88+i}\nv_add_f32 v{92+i}, v{92+i}, v{96+i}")
    for i in range(4): A(f"v_add_f32 v{84+i}, v{84+i}, v{92+i}")
    A("v_cvt_pk_bf16_f32 v84, v84, v85\nv_cvt_pk_bf16_f32 v85, v86, v87\nds_write_b64 v11, v[84:85]")
    arrive(Z_QRDY)
    A("s_branch L_kwait")
    A("L_xcc:")
    A(f"s_getreg_b32 {t0}, hwreg(HW_REG_XCC_ID)\ns_lshl_b32 {t0}, {t0}, 8\ns_or_b32 {t4}, {t0}, {sT}")
    A(f"v_mov_b32 v88, {t4}\nv_mov_b32 v89, {t4}\nv_mov_b32 v90, {t4}\nv_mov_b32 v91, {t4}")
    A(f"s_lshl_b32 {t0}, {sY}, 9\ns_add_u32 {t0}, {t0}, {WS_XCC}\ns_lshl_b32 {t1}, {sJ}, 4\ns_add_u32 {t1}, {t1}, {t0}\nv_mov_b32 v11, {t1}")
    A(f"v_and_b32 v15, 31, {vL}\nv_lshlrev_b32 v15, 4, v15\nv_add_u32 v15, {t0}, v15")
    A(f"s_mov_b64 exec, 1\nglobal_store_dwordx4 v11, v[88:91], {sWS} sc1\ns_mov_b64 exec, -1\ns_waitcnt vmcnt(0)")
    A("L_xpoll:")
    A(f"global_load_dwordx4 v[84:87], v15, {sWS} sc1\ns_waitcnt vmcnt(0)")
    check(range(84, 88), "v12"); check_end("v12", "L_xpoll")
    A(f"v_cmp_ne_u32 vcc, {t4}, v84\ns_cmp_eq_u64 vcc, 0\ns_cselect_b32 {t0}, 1, 0")
    if opt.get("force_global"): A(f"s_mov_b32 {t0}, 0")
    A(f"v_mov_b32 v12, {t0}\nds_write_b32 {vZ}, v12 offset:{Z_LOCAL}")
    arrive(Z_QRDY)
    A("L_kwait:")
    A(f"s_lshl_b32 {t0}, {sW}, 13\nv_xor_b32 v11, {vG}, {vN}\nv_lshlrev_b32 v11, 4, v11\nv_lshl_add_u32 v11, {vN}, 8, v11\nv_add_u32 v11, {t0}, v11")
    A("v_xor_b32 v12, 64, v11\nv_xor_b32 v15, 0x80, v11\nv_xor_b32 v16, 0xc0, v11")
    A(f"v_and_b32 v17, 3, {vN}\nv_mul_u32_u24 v18, 320, v17\nv_lshl_add_u32 v18, {vG}, 4, v18\nv_add_u32 v18, {L_Q}, v18")
    A("s_waitcnt vmcnt(0)")
    spin(Z_FK, 1, sleep=1)
    stamp(4)
    for tt in range(2):
        for j, a in enumerate(("v11", "v12", "v15", "v16")):
            A(f"ds_read_b128 {rng(20+16*tt+4*j,4)}, {a} offset:{4096*tt}")
    arrive(Z_KCONS)
    spin(Z_QRDY, 3, sleep=1)
    stamp(5)
    for j in range(4): A(f"ds_read_b128 {rng(52+4*j,4)}, v18 offset:{64*j}")
    A(f"ds_read_b32 {vS}, {vZ} offset:{Z_LOCAL}\ns_waitcnt lgkmcnt(0)\nv_readfirstlane_b32 {sLOC}, {vS}")
    for j in range(4):
        for tt in range(2):
            A(f"v_mfma_f32_16x16x32_bf16 {rng(68+4*tt,4)}, {rng(20+16*tt+4*j,4)}, {rng(52+4*j,4)}, {'0' if j==0 else rng(68+4*tt,4)}")
    A(f"s_lshl_b32 {t0}, {sW}, 2\ns_add_u32 {t0}, {t0}, {L_MAX}\nv_lshlrev_b32 v11, 5, v17\nv_add_u32 v12, {L_MAX}, v11\nv_add_u32 v11, {t0}, v11")
    A(f"v_lshlrev_b32 v15, 4, v17\nv_lshl_add_u32 v15, {vG}, 6, v15\nv_add_u32 v15, {L_P}, v15\ns_lshl_b32 {t0}, {sW}, 8\nv_add_u32 v16, {t0}, v15")
    def round8(base):
        for i in range(4): A(f"v_cvt_pk_bf16_f32 v{76+i}, v{base+2*i}, v{base+2*i+1}")
        for i in range(4): A(f"v_lshlrev_b32 v{base+2*i}, 16, v{76+i}\nv_and_b32 v{base+2*i+1}, 0xffff0000, v{76+i}")
    round8(68)
    for i in range(8): A(f"v_mul_f32 v{68+i}, {f2u(128**-0.5)}, v{68+i}")
    round8(68)
    A("v_max3_f32 v76, v68, v69, v70\nv_max3_f32 v77, v71, v72, v73\nv_max3_f32 v76, v74, v75, v76\nv_max_f32 v76, v76, v77")
    def xg(op, v, t):
        A(f"v_mov_b32 {t}, {v}\nv_permlane16_swap_b32 {v}, {t}\n{op} {v}, {v}, {t}\nv_mov_b32 {t}, {v}\nv_permlane32_swap_b32 {v}, {t}\n{op} {v}, {v}, {t}")
    xg("v_max_f32", "v76", "v77")
    A("ds_write_b32 v11, v76")
    arrive(Z_CB)
    A(f"v_lshrrev_b32 v18, 2, {vN}\nv_lshl_add_u32 v19, {vG}, 2, v18\nv_and_b32 v18, 7, v19\nv_xor_b32 v18, {sW}, v18\nv_lshlrev_b32 v19, 8, v19\nv_lshl_add_u32 v19, v18, 5, v19\nv_lshl_add_u32 v19, v17, 3, v19\nv_add_u32 v19, {L_V}, v19")
    spin(Z_CB, 8)
    A("ds_read_b128 v[76:79], v12\nds_read_b128 v[80:83], v12 offset:16\ns_waitcnt lgkmcnt(0)")
    A("v_max3_f32 v76, v76, v77, v78\nv_max3_f32 v80, v80, v81, v82\nv_max3_f32 v76, v76, v79, v83\nv_max_f32 v76, v76, v80")
    A(f"s_mov_b32 {t1}, {f2u(LOG2E)}\nv_mul_f32 v84, {t1}, v76")
    for i in range(8): A(f"v_fma_f32 v{68+i}, v{68+i}, {t1}, -v84")
    for i in range(8): A(f"v_exp_f32 v{68+i}, v{68+i}")
    for i in range(4): A(f"v_cvt_pk_bf16_f32 v{76+i}, v{68+2*i}, v{69+2*i}")
    A("ds_write_b128 v16, v[76:79]")
    A("v_add_f32 v68, v68, v69\nv_add_f32 v70, v70, v71\nv_add_f32 v72, v72, v73\nv_add_f32 v74, v74, v75\nv_add_f32 v68, v68, v70\nv_add_f32 v72, v72, v74\nv_add_f32 v68, v68, v72")
    xg("v_add_f32", "v68", "v69")
    A(f"ds_write_b32 v11, v68 offset:{L_SUM-L_MAX}")
    arrive(Z_CC)
    A(f"s_lshl_b32 {t0}, {sY}, 5\ns_add_u32 {t2}, {t0}, {sJ}\ns_lshl_b32 {t0}, {t2}, 11\ns_lshl_b32 {t1}, {sW}, 6\ns_add_u32 {t0}, {t0}, {t1}\ns_add_u32 {t0}, {t0}, {WS_O}")
    A(f"v_lshlrev_b32 v18, 9, v17\nv_lshl_add_u32 v18, {vG}, 4, v18\nv_add_u32 v18, {t0}, v18")
    spin(Z_CC, 8)
    A(f"ds_read_b128 v[76:79], v12 offset:{L_SUM-L_MAX}\nds_read_b128 v[80:83], v12 offset:{L_SUM-L_MAX+16}")
    for t in range(8): A(f"ds_read_b128 {rng(20+4*t,4)}, v15 offset:{256*t}")
    A("s_waitcnt lgkmcnt(8)")
    A("v_add_f32 v76, v76, v77\nv_add_f32 v78, v78, v79\nv_add_f32 v80, v80, v81\nv_add_f32 v82, v82, v83\nv_add_f32 v76, v76, v78\nv_add_f32 v80, v80, v82\nv_add_f32 v76, v76, v80")
    A("v_log_f32 v77, v76\nv_rcp_f32 v85, v76\nv_add_f32 v84, v84, v77")
    A(f"s_cmp_lg_u32 {sW}, 0\ns_cbranch_scc1 L_nolse")
    tag(88, 84); A("v_mov_b32 v89, v88\nv_mov_b32 v90, v88\nv_mov_b32 v91, v88")
    A(f"s_lshl_b32 {t0}, {t2}, 6\ns_add_u32 {t0}, {t0}, {WS_LSE}\nv_lshlrev_b32 v11, 4, v17\nv_add_u32 v11, {t0}, v11\ns_mov_b64 exec, 15")
    store_local(f"global_store_dwordx4 v11, v[88:91], {sWS}")
    A("s_mov_b64 exec, -1")
    A("L_nolse:")
    A("s_waitcnt lgkmcnt(0)")
    stamp(6)
    A("s_barrier")
    stamp(7)
    for t in range(8):
        A(f"ds_read_b64_tr_b16 {rng(52+4*t,2)}, v19 offset:{8192*t}\nds_read_b64_tr_b16 {rng(54+4*t,2)}, v19 offset:{8192*t+4096}")
    for t in range(8):
        A(f"s_waitcnt lgkmcnt({14-2*t})")
        A(f"v_mfma_f32_16x16x32_bf16 v[88:91], {rng(52+4*t,4)}, {rng(20+4*t,4)}, {'0' if t==0 else 'v[88:91]'}")
    A("s_mov_b32 exec_lo, 0x000f000f\ns_mov_b32 exec_hi, 0x000f000f")
    for i in range(4): A(f"v_mul_f32 v{88+i}, v{88+i}, v85")
    for i in range(4): tag(88+i, 88+i)
    store_local(f"global_store_dwordx4 v18, v[88:91], {sWS}")
    A("s_mov_b64 exec, -1")
    stamp(8)
    A(f"s_cmp_ge_u32 {sSP}, 2\ns_cbranch_scc1 L_notop")

    A(f"s_lshl_b32 {t0}, {sSP}, 1\ns_lshr_b32 {t1}, {sW}, 2\ns_add_u32 {t2}, {t0}, {t1}")
    A(f"s_lshl_b32 {t0}, {sY}, 16\ns_lshl_b32 {t1}, {t2}, 9\ns_add_u32 {t0}, {t0}, {t1}\ns_and_b32 {t1}, {sW}, 3\ns_lshl_b32 {t1}, {t1}, 7\ns_add_u32 {t0}, {t0}, {t1}\ns_add_u32 {t0}, {t0}, {WS_O}")
    A(f"v_and_b32 v16, 7, {vN}\nv_lshrrev_b32 v17, 3, {vN}\nv_lshl_add_u32 v17, v16, 1, v17")
    A(f"v_lshlrev_b32 v11, 12, v17\nv_lshl_add_u32 v11, {vG}, 5, v11\nv_add_u32 v11, {t0}, v11")
    A(f"s_lshl_b32 {t0}, {sY}, 11\ns_lshl_b32 {t1}, {t2}, 4\ns_add_u32 {t0}, {t0}, {t1}\ns_add_u32 {t0}, {t0}, {WS_LSE}\nv_lshlrev_b32 v12, 7, v17\nv_add_u32 v12, {t0}, v12")
    def op_loads():
        A(f"global_load_dwordx4 v[84:87], v12, {sWS} sc1\nglobal_load_dwordx4 v[88:91], v12, {sWS} offset:64 sc1")
        A(f"global_load_dwordx4 v[92:95], v11, {sWS} sc1\nglobal_load_dwordx4 v[96:99], v11, {sWS} offset:16 sc1")
        A(f"global_load_dwordx4 v[100:103], v11, {sWS} offset:2048 sc1\nglobal_load_dwordx4 v[104:107], v11, {sWS} offset:2064 sc1")
    op_loads()
    A(f"v_lshlrev_b32 v15, 4, v16\nv_lshl_add_u32 v15, {vG}, 7, v15\nv_add_u32 v15, {L_XN}, v15\ns_lshl_b32 {t0}, {sW}, 9\nv_add_u32 v18, {t0}, v15")
    A(f"v_lshrrev_b32 v17, 3, {vN}\nv_lshl_add_u32 v15, v17, 9, v15")
    A(f"s_lshl_b32 {t0}, {sB}, 15\ns_lshl_b32 {t1}, {sY}, 10\ns_add_u32 {t0}, {t0}, {t1}\ns_lshl_b32 {t1}, {sSP}, 9\ns_add_u32 {t0}, {t0}, {t1}\ns_and_b32 {t1}, {sW}, 3\ns_lshl_b32 {t1}, {t1}, 7\ns_add_u32 {t0}, {t0}, {t1}\ns_add_u32 {t0}, {t0}, {WS_A}")
    A(f"v_lshrrev_b32 v17, 1, v16\nv_lshlrev_b32 v17, 13, v17\nv_and_b32 v16, 1, v16\nv_lshl_add_u32 v17, v16, 6, v17\nv_lshl_add_u32 v17, {vG}, 4, v17\nv_add_u32 v17, {t0}, v17")
    A("s_barrier")
    A(f"s_cmp_lt_u32 {sW}, 4\ns_cbranch_scc1 L_opchk")
    for k in range(8):
        A(f"ds_read_b64_tr_b16 {rng(20+4*k,2)}, {vTA} offset:{4096*k}\nds_read_b64_tr_b16 {rng(22+4*k,2)}, {vTA} offset:{4096*k+512}")
    A("s_branch L_opchk")
    A("L_oppoll:")
    op_loads()
    A("L_opchk:")
    A("s_waitcnt vmcnt(0)")
    check(range(84, 108), "v16"); check_end("v16", "L_oppoll")
    stamp(9)
    ror8 = "row_ror:8 row_mask:0xf bank_mask:0xf"
    A(f"v_max_f32 v85, v84, v88\nv_max_f32_dpp v85, v85, v85 {ror8}\nv_sub_f32 v84, v84, v85\nv_sub_f32 v88, v88, v85\nv_exp_f32 v84, v84\nv_exp_f32 v88, v88")
    A(f"v_add_f32 v85, v84, v88\nv_add_f32_dpp v85, v85, v85 {ror8}\nv_rcp_f32 v85, v85\nv_mul_f32 v84, v84, v85\nv_mul_f32 v88, v88, v85")
    for i in range(8): A(f"v_mul_f32 v{92+i}, v{92+i}, v84")
    for i in range(8): A(f"v_fmac_f32 v{92+i}, v{100+i}, v88")
    for i in range(8): A(f"v_add_f32_dpp v{92+i}, v{92+i}, v{92+i} {ror8}")
    for i in range(4): A(f"v_cvt_pk_bf16_f32 v{92+i}, v{92+2*i}, v{93+2*i}")
    A("ds_write_b128 v18, v[92:95]\ns_waitcnt lgkmcnt(0)\ns_barrier")
    A(f"s_cmp_lt_u32 {sW}, 4\ns_cbranch_scc1 L_reduce")
    for u in range(4): A(f"ds_read_b128 {rng(52+4*u,4)}, v15 offset:{1024*u}")
    for u in range(4):
        A(f"s_waitcnt lgkmcnt({3-u})")
        A(f"v_mfma_f32_16x16x32_bf16 v[84:87], {rng(20+8*u,4)}, {rng(52+4*u,4)}, {'0' if u==0 else 'v[84:87]'}")
        A(f"v_mfma_f32_16x16x32_bf16 v[88:91], {rng(24+8*u,4)}, {rng(52+4*u,4)}, {'0' if u==0 else 'v[88:91]'}")
    for i in range(4): A(f"v_add_f32_dpp v{84+i}, v{88+i}, v{84+i} {ror8}")
    for i in range(4): tag(84+i, 84+i)
    A(f"s_mov_b32 exec_lo, {MASK_N8[0]}\ns_mov_b32 exec_hi, {MASK_N8[1]}\nglobal_store_dwordx4 v17, v[84:87], {sWS} sc1\ns_mov_b64 exec, -1")
    stamp(10)
    A("s_branch L_final")

    A("L_notop:")
    A(f"s_cmp_lt_u32 {sW}, 4\ns_cbranch_scc1 L_reduce")
    A(f"s_cmp_eq_u32 {sB}, 7\ns_cbranch_scc1 L_exit")
    A(f"s_and_b32 {t2}, {sW}, 3")
    A(f"s_mov_b32 s40, s16\ns_mov_b32 s41, s17\ns_mov_b32 s42, {512*1792*2}\ns_mov_b32 s43, 0x20000")
    A(f"s_mov_b32 s56, s20\ns_mov_b32 s57, s21\ns_mov_b32 s58, {512*1792*2}\ns_mov_b32 s59, 0x20000")
    A(f"v_lshrrev_b32 v11, 1, {vL}\nv_mul_u32_u24 v11, 3584, v11\nv_and_b32 v12, 1, {vL}\nv_lshl_add_u32 v11, v12, 4, v11")
    A(f"s_mul_i32 {t0}, {t2}, {128*3584}\ns_lshl_b32 {t1}, s52, 5\ns_add_u32 {t0}, {t0}, {t1}\ns_lshl_b32 {t3}, {t2}, 13")
    for i in range(4):
        A(f"s_add_u32 m0, {t3}, {1024*i}\nbuffer_load_dwordx4 v11, s[40:43], {t0} offen nt lds\ns_add_u32 {t0}, {t0}, {32*3584}")
    A(f"v_lshlrev_b32 v12, 1, {vG}\nv_xor_b32 v12, v12, {vN}\nv_lshlrev_b32 v12, 4, v12\nv_lshl_add_u32 v12, {vG}, 10, v12\nv_xor_b32 v15, 0x80, v12")
    A(f"s_lshl_b32 {t0}, s52, 14\ns_lshl_b32 {t1}, {t2}, 8\ns_add_u32 {t0}, {t0}, {t1}")
    for i in range(4):
        A(f"s_add_u32 m0, {t3}, {4096+1024*i}\nbuffer_load_dwordx4 {'v12' if i%2==0 else 'v15'}, s[56:59], {t0} offen nt lds\ns_add_u32 {t0}, {t0}, 4096")
    A(f"v_lshrrev_b32 v16, 2, {vN}\nv_and_b32 v17, 3, {vN}\nv_lshl_add_u32 v11, {vG}, 3, v16\nv_lshlrev_b32 v11, 5, v11\nv_lshl_add_u32 v11, v17, 3, v11\nv_add_u32 v11, {t3}, v11")
    A(f"v_lshl_add_u32 v12, {vG}, 2, v16\nv_and_b32 v15, 7, v12\nv_lshlrev_b32 v12, 8, v12\nv_lshl_add_u32 v12, v15, 5, v12\nv_lshl_add_u32 v12, v17, 3, v12\nv_add_u32 v12, {t3}, v12")
    A(f"s_lshl_b32 {t0}, {sY}, 14\ns_lshl_b32 {t1}, {t2}, 9\ns_add_u32 {t0}, {t0}, {t1}\ns_add_u32 {t0}, {t0}, {WS_H}")
    A(f"v_and_b32 v16, 7, {vN}\nv_lshrrev_b32 v17, 3, {vN}\nv_lshlrev_b32 v18, 11, v16\nv_lshl_add_u32 v18, v17, 7, v18\nv_lshl_add_u32 v18, {vG}, 5, v18\nv_add_u32 v18, {t0}, v18")
    A(f"s_mul_i32 {t0}, {t2}, {4*14336}\ns_lshl_b32 {t1}, s52, 7\ns_add_u32 {t0}, {t0}, {t1}\ns_add_u32 {t0}, {t0}, {WS_F}\ns_mov_b32 {t1}, {16*14336}")
    A(f"v_mul_lo_u32 v19, v16, {t1}\nv_lshl_add_u32 v19, v17, 6, v19\nv_lshl_add_u32 v19, {vG}, 4, v19\nv_add_u32 v19, {t0}, v19")
    for u in range(1, 4): A(f"v_add_u32 v{107+u}, {14336*u}, v19")
    A(f"v_lshl_add_u32 v13, {vG}, 3, v16\nv_lshlrev_b32 v13, 4, v13\nv_add_u32 v13, {L_Z+Z_S}, v13")
    A(f"v_lshlrev_b32 v14, 4, {vG}\nv_add_u32 v14, {L_Z+Z_C}, v14\nv_lshlrev_b32 v16, 3, v16\nv_add_u32 v16, {L_Z+Z_ST}, v16")
    A(f"v_lshlrev_b32 v15, 2, {vG}\nv_sub_u32 v15, {vN}, v15")
    for r in range(4): A(f"v_cmp_eq_u32 vcc, {r}, v15\nv_cndmask_b32 v{112+r}, 0, 1.0, vcc")
    A("v_mov_b32 v116, 0x3f803f80\nv_mov_b32 v117, 0x3f803f80\nv_mov_b32 v118, 0x3f803f80\nv_mov_b32 v119, 0x3f803f80")
    A("v_mov_b32 v100, 0\nv_mov_b32 v101, 0\nv_mov_b32 v102, 0\nv_mov_b32 v103, 0")
    A("s_waitcnt vmcnt(0)")
    stamp(9)
    for k in range(4):
        A(f"ds_read_b64_tr_b16 {rng(20+4*k,2)}, v11 offset:{1024*k}\nds_read_b64_tr_b16 {rng(22+4*k,2)}, v11 offset:{1024*k+128}")
    for t in range(8):
        A(f"v_xor_b32 v15, {32*t}, v12\nds_read_b64_tr_b16 {rng(36+2*t,2)}, v15 offset:4096")
    A("s_waitcnt lgkmcnt(0)")
    for k in range(4):
        A(f"v_mfma_f32_16x16x32_bf16 v[84:87], {rng(20+4*k,4)}, v[116:119], {'0' if k==0 else 'v[84:87]'}")
    A("s_mov_b32 exec_lo, 0x00010001\ns_mov_b32 exec_hi, 0x00010001")
    for r in range(4): A(f"ds_add_f32 v14, v{84+r} offset:{4*r}")
    A("s_mov_b64 exec, -1")
    A(f"v_lshlrev_b32 v104, 16, {vB1}\nv_and_b32 v105, 0xffff0000, {vB1}\nv_lshl_add_u32 v106, v17, 3, v13\nv_lshl_add_u32 v107, v17, 3, v14")
    A(f"s_mov_b32 {t4}, 0x07060302")
    A("L_hpoll:")
    A(f"global_load_dwordx4 v[52:55], v18, {sWS} sc1\nglobal_load_dwordx4 v[56:59], v18, {sWS} offset:16 sc1\nglobal_load_dwordx4 v[60:63], v18, {sWS} offset:256 sc1\nglobal_load_dwordx4 v[64:67], v18, {sWS} offset:272 sc1")
    A("s_waitcnt vmcnt(0)")
    check(range(52, 68), "v15"); check_end("v15", "L_hpoll")
    stamp(10)
    for i in range(8): A(f"v_perm_b32 v{68+i}, v{53+2*i}, v{52+2*i}, {t4}")
    for u in range(2):
        c = lambda a: '0' if u == 0 else rng(a, 4)
        Bf = rng(68+4*u, 4)
        A(f"v_mfma_f32_16x16x32_bf16 v[92:95], {Bf}, {Bf}, {c(92)}")
        A(f"v_mfma_f32_16x16x32_bf16 v[96:99], v[116:119], {Bf}, {c(96)}")
        A(f"v_mfma_f32_16x16x32_bf16 v[88:91], {rng(24+8*u,4)}, {Bf}, {c(88)}")
        A(f"v_mfma_f32_16x16x32_bf16 v[84:87], {rng(20+8*u,4)}, {Bf}, {c(84)}")
    A("v_mul_f32 v92, v92, v112\nv_fmac_f32 v92, v93, v113\nv_fmac_f32 v92, v94, v114\nv_fmac_f32 v92, v95, v115")
    A("s_mov_b32 exec_lo, 0x00f0000f\ns_mov_b32 exec_hi, 0xf0000f00\nds_add_f32 v16, v92 offset:4\nds_add_f32 v16, v96\ns_mov_b64 exec, -1")
    for i in range(4): A(f"v_add_f32_dpp v{84+i}, v{88+i}, v{84+i} {ror8}")
    A(f"s_mov_b32 exec_lo, {MASK_N8[0]}\ns_mov_b32 exec_hi, {MASK_N8[1]}")
    for r in range(4): A(f"ds_add_f32 v13, v{84+r} offset:{4*r}")
    A("s_mov_b64 exec, -1\ns_waitcnt lgkmcnt(0)\ns_barrier")
    A("ds_read_b64 v[52:53], v16\nds_read_b64 v[54:55], v107\nds_read_b64 v[56:57], v106\ns_waitcnt lgkmcnt(2)")
    A(f"v_mul_f32 v52, {f2u(1/512)}, v52\nv_mul_f32 v58, v52, v52\ns_mov_b32 {t0}, {f2u(1/512)}\nv_fma_f32 v53, v53, {t0}, -v58\nv_add_f32 v53, {f2u(1e-5)}, v53\nv_rsq_f32 v53, v53")
    A("s_waitcnt lgkmcnt(0)\nv_fma_f32 v56, -v52, v54, v56\nv_fma_f32 v57, -v52, v55, v57\nv_fma_f32 v56, v56, v53, v104\nv_fma_f32 v57, v57, v53, v105")
    c0 = -2*math.sqrt(2/math.pi)*LOG2E
    A(f"s_mov_b32 {t0}, {f2u(c0*0.044715)}\nv_mov_b32 v60, {f2u(c0)}")
    A(f"v_mul_f32 v58, v56, v56\nv_mul_f32 v59, v57, v57\nv_fma_f32 v58, v58, {t0}, v60\nv_fma_f32 v59, v59, {t0}, v60\nv_mul_f32 v58, v58, v56\nv_mul_f32 v59, v59, v57")
    A("v_exp_f32 v58, v58\nv_exp_f32 v59, v59\nv_add_f32 v58, 1.0, v58\nv_add_f32 v59, 1.0, v59\nv_rcp_f32 v58, v58\nv_rcp_f32 v59, v59\nv_mul_f32 v56, v56, v58\nv_mul_f32 v57, v57, v59\nv_cvt_pk_bf16_f32 v56, v56, v57")
    A("v_mov_b32_dpp v100, v56 quad_perm:[0,1,2,3] row_mask:0xf bank_mask:0x3\nv_mov_b32_dpp v101, v56 row_ror:8 row_mask:0xf bank_mask:0x3")
    A("v_mov_b32_dpp v102, v56 row_ror:8 row_mask:0xf bank_mask:0xc\nv_mov_b32_dpp v103, v56 quad_perm:[0,1,2,3] row_mask:0xf bank_mask:0xc")
    for u in range(4): A(f"v_mfma_f32_16x16x32_bf16 {rng(68+4*u,4)}, {rng(36+4*u,4)}, v[100:103], 0")
    for u in range(4):
        for i in range(4): tag(68+4*u+i, 68+4*u+i)
        A(f"global_store_dwordx4 {'v19' if u==0 else 'v%d'%(107+u)}, {rng(68+4*u,4)}, {sWS} sc1")
    stamp(11)
    A("s_branch L_exit")

    A("L_reduce:")
    A(f"s_lshl_b32 {t0}, {sSIG}, 13\ns_lshl_b32 {t1}, {sW}, 7\ns_add_u32 {t0}, {t0}, {t1}\ns_add_u32 {t0}, {t0}, {WS_A}")
    A(f"v_lshrrev_b32 v11, 3, {vL}\nv_lshlrev_b32 v11, 10, v11\nv_and_b32 v12, 7, {vL}\nv_lshl_add_u32 v11, v12, 4, v11\nv_add_u32 v11, {t0}, v11")
    A(f"s_lshl_b32 {t0}, {sY}, 14\ns_add_u32 {t0}, {t0}, {WS_H}\nv_lshlrev_b32 v14, 2, v14\nv_add_u32 v14, {t0}, v14\nv_lshlrev_b32 v13, 2, v13\nv_add_u32 v13, {L_HL}, v13")
    A(f"v_lshlrev_b32 {vXR}, 16, {vXR}")
    A("L_rpoll:")
    A(f"global_load_dwordx4 v[52:55], v11, {sWS} sc1\nglobal_load_dwordx4 v[56:59], v11, {sWS} offset:512 sc1\ns_waitcnt vmcnt(0)")
    check(range(52, 60), "v12"); check_end("v12", "L_rpoll")
    stamp(12)
    def treduce():
        for i in range(4): A(f"v_add_f32 v{52+i}, v{52+i}, v{56+i}")
        A("v_permlane32_swap_b32 v52, v53\nv_permlane32_swap_b32 v54, v55\nv_add_f32 v52, v52, v53\nv_add_f32 v54, v54, v55")
        A(f"v_permlane16_swap_b32 v52, v54\nv_add_f32 v52, v52, v54\nv_add_f32_dpp v52, v52, v52 {ror8}")
    treduce()
    rnd("v52", "v52"); A(f"v_add_f32 v52, v52, {vXR}\nv_cvt_pk_bf16_f32 v52, v52, v52\nv_lshl_or_b32 v52, v52, 16, {vT}")
    store_local(f"global_store_dword v14, v52, {sWS}")
    A("ds_write_b32 v13, v52")
    stamp(13)
    A(f"s_cmp_ge_u32 {sSP}, 2\ns_cbranch_scc1 L_exit")

    A("L_final:")
    A(f"s_lshl_b32 {t0}, s54, 4\ns_add_u32 {t0}, {t0}, s53\ns_mul_i32 {t0}, {t0}, 14336\ns_mul_i32 {t1}, {sW}, {14*128}\ns_add_u32 {t0}, {t0}, {t1}\ns_add_u32 {t0}, {t0}, {WS_F}")
    A(f"v_lshlrev_b32 v11, 4, {vL}\nv_add_u32 v11, {t0}, v11")
    A(f"v_mov_b32 v56, {vT}\nv_mov_b32 v57, {vT}\nv_mov_b32 v58, {vT}\nv_mov_b32 v59, {vT}")
    A(f"v_and_b32 v14, 1, {vG}\nv_lshrrev_b32 v15, 1, {vG}\nv_lshl_add_u32 v14, v14, 1, v15\nv_and_b32 v15, 7, {vL}\nv_lshl_add_u32 v14, v15, 2, v14\nv_lshlrev_b32 v14, 2, v14\nv_add_u32 v14, {L_Z+Z_OUT}, v14")
    A(f"s_and_b32 {t0}, {sY}, 1\ns_lshl_b32 {t0}, {t0}, 8\ns_bfe_u32 {t1}, {sY}, 0x10001\ns_lshl_b32 {t1}, {t1}, 7\ns_add_u32 {t0}, {t0}, {t1}\ns_add_u32 {t0}, {t0}, {L_HL}")
    A(f"v_lshlrev_b32 v15, 3, {vN}\nv_add_u32 v16, {t0}, v15\nv_add_u32 v15, {L_Z+Z_OUT}, v15")
    A(f"s_lshl_b32 {t0}, s54, 10\ns_lshl_b32 {t1}, s53, 6\ns_add_u32 {t0}, {t0}, {t1}\nv_lshlrev_b32 v17, 2, {vN}\nv_add_u32 v17, {t0}, v17")
    A(f"v_lshlrev_b32 v18, 16, {vB2}\nv_and_b32 v19, 0xffff0000, {vB2}")
    A("L_fpoll:")
    A(f"global_load_dwordx4 v[52:55], v11, {sWS} sc1\ns_mov_b32 exec_hi, 0xffff\nglobal_load_dwordx4 v[56:59], v11, {sWS} offset:1024 sc1\ns_mov_b32 exec_hi, -1\ns_waitcnt vmcnt(0)")
    check(range(52, 60), "v12"); check_end("v12", "L_fpoll")
    stamp(14)
    treduce()
    A(f"s_mov_b32 exec_lo, {MASK_N8[0]}\ns_mov_b32 exec_hi, {MASK_N8[1]}\nds_add_f32 v14, v52\ns_mov_b64 exec, -1\ns_waitcnt lgkmcnt(0)\ns_barrier")
    A(f"s_cmp_lg_u32 {sW}, 0\ns_cbranch_scc1 L_exit")
    A("ds_read_b64 v[52:53], v15\nds_read_b64 v[54:55], v16\ns_waitcnt lgkmcnt(1)")
    A("v_cvt_pk_bf16_f32 v53, v52, v53\nv_lshlrev_b32 v52, 16, v53\nv_and_b32 v53, 0xffff0000, v53\nv_add_f32 v52, v52, v18\nv_add_f32 v53, v53, v19")
    A("v_cvt_pk_bf16_f32 v53, v52, v53\nv_lshlrev_b32 v52, 16, v53\nv_and_b32 v53, 0xffff0000, v53\ns_waitcnt lgkmcnt(0)")
    A(f"v_and_b32 v54, 0xffff0000, v54\nv_and_b32 v55, 0xffff0000, v55\nv_add_f32 v52, v52, v54\nv_add_f32 v53, v53, v55\nv_cvt_pk_bf16_f32 v52, v52, v53")
    A(f"s_mov_b64 exec, 0xffff\nglobal_store_dword v17, v52, {sOUT}")
    A(f"s_cmp_lg_u32 s2, 0\ns_cbranch_scc1 L_exit")
    A(f"v_mov_b32 v11, {WS_E}\nv_mov_b32 v12, {sE}\ns_mov_b64 exec, 1\nglobal_store_dword v11, v12, {sWS}")
    A("s_branch L_exit")

    A("L_loader:")
    for i in range(4):
        A(f"v_add_u32 v11, {4*i}, {vG}\nv_xor_b32 v11, v11, {vN}\nv_lshlrev_b32 v11, 4, v11\nv_lshl_add_u32 v{20+i}, {vG}, 8, v11")
    A(f"v_lshlrev_b32 v11, 1, {vG}\nv_xor_b32 v11, v11, {vN}\nv_lshlrev_b32 v11, 4, v11\nv_lshl_add_u32 v24, {vG}, 8, v11\nv_xor_b32 v25, 0x80, v24")
    A(f"v_and_b32 v11, 1, {vG}\nv_lshlrev_b32 v11, 1, v11\nv_and_b32 v12, 7, {vL}\nv_xor_b32 v11, v11, v12\nv_lshlrev_b32 v11, 4, v11\nv_lshrrev_b32 v12, 3, {vL}")
    A("v_lshl_add_u32 v26, v12, 13, v11\nv_xor_b32 v27, 64, v26\nv_lshl_add_u32 v28, v12, 10, v11\nv_xor_b32 v29, 64, v28")
    A(f"s_lshl_b32 {t0}, {sSP}, 20\ns_lshl_b32 {t1}, {sY}, 10\ns_add_u32 {t0}, {t0}, {t1}\ns_lshl_b32 {t1}, {sB}, 7\ns_add_u32 {t0}, {t0}, {t1}")
    A(f"s_lshl_b32 {t2}, {sB}, 3\ns_add_u32 {t2}, {t2}, {sY}\ns_lshl_b32 {t2}, {t2}, 20\ns_lshl_b32 {t1}, {sSP}, 16\ns_add_u32 {t2}, {t2}, {t1}\ns_add_u32 {t2}, {t2}, 0xc0000")
    A(f"s_mov_b32 s42, {4<<20}\ns_mov_b32 s43, 0x20000\ns_mov_b32 s58, {64<<20}\ns_mov_b32 s59, 0x20000\ns_mov_b32 {t3}, {L_WQ}")
    A("s_waitcnt lgkmcnt(0)")
    A("s_mov_b32 s40, s10\ns_mov_b32 s41, s11\ns_mov_b32 s56, s6\ns_mov_b32 s57, s7")
    def wtile(lab, va, vb, step, end, pace):
        A(f"{lab}:\ns_mov_b32 m0, {t3}\ns_add_u32 {t3}, {t3}, 1024\nbuffer_load_dwordx4 {va}, s[40:43], {t0} offen nt lds\ns_add_u32 {t0}, {t0}, {step}")
        A(f"s_mov_b32 m0, {t3}\ns_add_u32 {t3}, {t3}, 1024\nbuffer_load_dwordx4 {vb}, s[40:43], {t0} offen nt lds\ns_add_u32 {t0}, {t0}, {step}")
        if pace is not None: A(f"s_waitcnt vmcnt({pace})")
        A(f"s_cmp_lt_u32 {t3}, {end}\ns_cbranch_scc1 {lab}")
    wtile("L_ldwq", "v26", "v27", 8*8192, L_WQ+16384, None)
    A("s_barrier")
    def kvloop(lab, regs, lds0, flag, flagbytes):
        A(f"s_mov_b32 {t3}, {lds0}\ns_mov_b32 {t4}, {t2}\n{lab}:\ns_mov_b32 m0, {t3}\ns_add_u32 {t3}, {t3}, 4096")
        for i in range(4): A(f"buffer_load_dwordx4 {regs[i]}, s[56:59], {t4} offen offset:{1024*i} nt lds")
        A(f"s_add_u32 {t4}, {t4}, 4096\ns_waitcnt vmcnt({win})")
        sk = U("nf")
        A(f"s_cmp_lg_u32 {t3}, {lds0+flagbytes}\ns_cbranch_scc1 {sk}\nds_write_b32 {vZ}, {vOne} offset:{flag}\n{sk}:")
        A(f"s_cmp_lt_u32 {t3}, {lds0+65536}\ns_cbranch_scc1 {lab}")
    assert win % 4 == 0
    kvloop("L_ldk", ["v20", "v21", "v22", "v23"], L_K, Z_FXW, win*1024)
    if stamps: A("s_memrealtime s[66:67]")
    A("s_mov_b32 s56, s8\ns_mov_b32 s57, s9")
    kvloop("L_ldv", ["v24", "v25", "v24", "v25"], L_V, Z_FK, win*1024)
    if stamps: A("s_memrealtime s[68:69]")
    A(f"s_cmp_lt_u32 {sSP}, 2\ns_cbranch_scc1 L_ldwo")
    A("s_waitcnt vmcnt(0)")
    if stamps: A("s_memrealtime s[70:71]")
    A("s_barrier\ns_branch L_exit")
    A("L_ldwo:")
    spin(Z_KCONS, 8)
    A(f"s_mov_b32 s40, s12\ns_mov_b32 s41, s13\ns_lshl_b32 {t0}, {sY}, 19\ns_lshl_b32 {t1}, {sSP}, 18\ns_add_u32 {t0}, {t0}, {t1}\ns_lshl_b32 {t1}, {sB}, 7\ns_add_u32 {t0}, {t0}, {t1}\ns_mov_b32 {t3}, 0")
    wo1 = opt.get("wo1", win)
    wtile("L_ldwo1", "v28", "v29", 8192, wo1*1024, win)
    A(f"s_waitcnt vmcnt({wo1})")
    if stamps: A("s_memrealtime s[70:71]")
    A("s_barrier")
    if wo1 < 32: wtile("L_ldwo2", "v28", "v29", 8192, 32768, None)
    A("s_waitcnt vmcnt(0)")
    if stamps: A("s_memrealtime s[72:73]")
    A("s_barrier")
    A("L_exit:")
    if stamps:
        A("s_memrealtime s[94:95]\ns_mov_b64 exec, -1\ns_waitcnt lgkmcnt(0)")
        A(f"s_lshl_b32 {t0}, s2, 4\ns_add_u32 {t0}, {t0}, {sW}\ns_lshl_b32 {t0}, {t0}, 6\ns_add_u32 {t0}, {t0}, {WS_STAMP}\nv_mov_b32 v11, {t0}")
        for q in range(4):
            for i in range(4): A(f"v_mov_b32 v{52+i}, s{64+2*(4*q+i)}")
            A(f"global_store_dwordx4 v11, v[52:55], {sWS} offset:{16*q}")
        if stamps == "dbg":
            A(f"s_cmp_lg_u32 {sW}, 0\ns_cbranch_scc1 L_end\ns_cmp_ge_u32 {sJ}, 2\ns_cbranch_scc1 L_end\ns_not_b32 s64, s64\nv_mov_b32 v11, 0\ns_mov_b64 exec, 1")
            for k in range(16): A(f"v_mov_b32 v52, s{64+2*k}\nglobal_atomic_umax v11, v52, s[26:27] offset:{4*k} sc1")
    A("L_end:\ns_endpgm")
    body, npad = pad_hazards(A.L + tail.L)
    nv = 120
    out = HEADER + f"; @launch grid=(256,1,1) block=(576,1,1) lds={LDS_BYTES}\n"
    out += f'.amdgcn_target "amdgcn-amd-amdhsa--gfx950"\n.text\n.globl {KNAME}\n.p2align 8\n.type {KNAME},@function\n{KNAME}:\n'
    out += "\n".join(("" if l.endswith(":") else "    ") + l for l in body) + "\n"
    out += f""".section .rodata,"a"
.p2align 6
.amdhsa_kernel {KNAME}
  .amdhsa_next_free_vgpr {nv}
  .amdhsa_next_free_sgpr 96
  .amdhsa_accum_offset {nv}
  .amdhsa_group_segment_fixed_size 0
  .amdhsa_kernarg_size 104
  .amdhsa_user_sgpr_count 2
  .amdhsa_user_sgpr_kernarg_segment_ptr 1
  .amdhsa_system_sgpr_workgroup_id_x 1
.end_amdhsa_kernel
"""
    return out

if __name__ == "__main__":
    open("sequential_preLN__sliding_block_cached__dense_activation_gelu__decode.s", "w").write(gen())
    open("k_stamps.s", "w").write(gen(stamps=True))
    open("k_dbg.s", "w").write(gen(stamps="dbg"))
```
